```python
import torch

def _softmax(x, axis=-1):
    return torch.softmax(x, dim=axis)
def _gelu(x):
    return torch.nn.functional.gelu(x, approximate="tanh")
def _silu(x):
    return torch.nn.functional.silu(x)
def _sigmoid(x):
    return torch.sigmoid(x)
def _layernorm(x, axis=-1, eps=1e-5):
    m = x.mean(dim=axis, keepdim=True)
    v = x.var(dim=axis, keepdim=True, unbiased=False)
    return (x - m) / torch.sqrt(v + eps)
def _scatter_add(tgt, idx, src, axis=0):
    return tgt.clone().index_add_(axis, idx, src)
def _segment_sum(src, seg, n):
    out = torch.zeros((n,) + src.shape[1:], dtype=src.dtype)
    return out.index_add_(0, seg, src)
def _pad(x, pw):
    flat = tuple(v for pair in reversed(pw) for v in pair)
    return torch.nn.functional.pad(x, flat)

kernel_name = 'standalone__mha_block_cached__near_ridge'

def setup_inputs():

    _w = (lambda a: (lambda t: t.to(torch.bfloat16) if t.is_floating_point() else t)(torch.as_tensor(a)))
    B, Sq, D = 8, 128, 512
    H, Sk, Dh = 32, 1024, 128
    return {
        "x": _w((lambda *s: torch.randn(*s, dtype=torch.bfloat16) * 0.8)(B, Sq, D)),
        "k_cache": _w((lambda *s: torch.randn(*s, dtype=torch.bfloat16) * 0.8)(B, H, Sk, Dh)),
        "v_cache": _w((lambda *s: torch.randn(*s, dtype=torch.bfloat16) * 0.05)(B, H, Sk, Dh)),
        "wq": _w((lambda *s: torch.randn(*s, dtype=torch.bfloat16) * 0.8)(D, H * Dh) * (D ** -0.5)),
        "wo": _w((lambda *s: torch.randn(*s, dtype=torch.bfloat16) * 0.05)(H * Dh, D) * ((H * Dh) ** -0.5)),
    }

def reference(x, k_cache, v_cache, wq, wo):
    B, Sq, D = x.shape
    H, Dh = 32, 128
    q = (lambda x, *d: x.permute(*d))((x @ wq).reshape(B, Sq, H, Dh), 0, 2, 1, 3)
    scores = torch.einsum("bhqd,bhkd->bhqk", q, k_cache) * (Dh ** -0.5)
    p = _softmax(scores, axis=-1)
    o = torch.einsum("bhqk,bhkd->bhqd", p, v_cache)
    return (lambda x, *d: x.permute(*d))(o, 0, 2, 1, 3).reshape(B, Sq, H * Dh) @ wo
```

```python
import re
KN = "standalone__mha_block_cached__near_ridge_kernel"

def regs(spec):
    if spec is None: return []
    if isinstance(spec, (list, tuple)):
        o = []
        for s in spec: o += regs(s)
        return o
    m = re.fullmatch(r"-?([vas])\[(\d+):(\d+)\]", spec)
    if m: return [f"{m.group(1)}{i}" for i in range(int(m.group(2)), int(m.group(3)) + 1)]
    m = re.fullmatch(r"-?([vas])(\d+)", spec)
    if m: return [f"{m.group(1)}{m.group(2)}"]
    if spec in ("vcc", "m0", "exec"): return [spec]
    return []

def R(kind, base, n=1):
    return f"{kind}{base}" if n == 1 else f"{kind}[{base}:{base+n-1}]"

class I:
    __slots__ = ("text", "kind", "rd", "wr", "srcc", "states", "passes")
    def __init__(self, text, kind, rd=(), wr=(), srcc=(), states=1):
        self.text, self.kind = text, kind
        self.rd, self.wr, self.srcc = regs(list(rd)), regs(list(wr)), regs(list(srcc))
        self.states = states
        self.passes = 8

TRANS = ("v_exp_f32", "v_rcp_f32", "v_log_f32", "v_rsq_f32", "v_sqrt_f32")
def valu(op, dst, *src, extra="", also_rd=(), also_wr=()):
    kind = "trans" if op in TRANS else "valu"
    if op.startswith("v_permlane"):
        return I(f"{op} {dst}, {src[0]}", "permlane", rd=[dst, src[0]], wr=[dst, src[0]])
    if op.startswith("v_readfirstlane") or op.startswith("v_readlane"):
        kind = "readlane"
    rd = list(src) + list(also_rd)
    if op.startswith("v_fmac"): rd.append(dst)
    txt = f"{op} {dst}, " + ", ".join(str(s) for s in src) + (" " + extra if extra else "")
    return I(txt, kind, rd=[s for s in rd if isinstance(s, str)], wr=[dst] + list(also_wr))
def mfma(d, a, b, c):
    return I(f"v_mfma_f32_32x32x16_bf16 {d}, {a}, {b}, {c}", "mfma", rd=[a, b], wr=[d], srcc=[c] if isinstance(c, str) else [])
def mfma16(d, a, b, c):
    i = I(f"v_mfma_f32_16x16x32_bf16 {d}, {a}, {b}, {c}", "mfma", rd=[a, b], wr=[d], srcc=[c] if isinstance(c, str) else [])
    i.passes = 4
    return i
def dsr(op, dst, addr, off):
    assert 0 <= off < 65536, off
    return I(f"{op} {dst}, {addr} offset:{off}", "dsr", rd=[addr], wr=[dst])
def dsw(op, addr, data, off):
    return I(f"{op} {addr}, {data} offset:{off}", "dsw", rd=[addr, data])
def salu(op, dst, *src):
    txt = f"{op} " + ", ".join(str(s) for s in ((dst,) if dst is not None else ()) + src)
    return I(txt, "salu", rd=[s for s in src if isinstance(s, str)], wr=[dst] if isinstance(dst, str) and not op.startswith("s_cmp") else [])
def dma(voff, srd, soff, off=0, flags=""):
    assert 0 <= off < 4096
    return I(f"buffer_load_dwordx4 {voff}, {srd}, {soff} offen offset:{off} {flags} lds".replace("  ", " "), "dma", rd=[voff, srd, "m0"] + ([soff] if isinstance(soff, str) else []))
def bload(op, dst, voff, srd, soff, off=0, flags=""):
    assert 0 <= off < 4096
    return I(f"{op} {dst}, {voff}, {srd}, {soff} offen offset:{off} {flags}".rstrip(), "vload", rd=[voff, srd] + ([soff] if isinstance(soff, str) else []), wr=[dst])
def bstore(op, data, voff, srd, soff, off=0, flags=""):
    assert 0 <= off < 4096
    return I(f"{op} {data}, {voff}, {srd}, {soff} offen offset:{off} {flags}".rstrip(), "vstore", rd=[data, voff, srd] + ([soff] if isinstance(soff, str) else []))
def raw(text, kind="other", rd=(), wr=(), states=1):
    return I(text, kind, rd=rd, wr=wr, states=states)

def hook(fn):
    return I(fn, "hook")
def need(*specs):
    return I("", "need", rd=list(specs))
VALUK = ("valu", "trans", "permlane", "readlane")
VMEMK = ("dma", "vload", "vstore")

class Emitter:
    def __init__(self):
        self.lines = []
        self.hist = []
        self.pos = 0
        self.lgkm = []
        self.nops = 0
        self.log = []
        self.tag = ""
        self.flt = None
    def text(self, s):
        self.lines.append(s)
    def comment(self, s):
        self.lines.append("; " + s)
    def label(self, name, reset=False):
        self.lines.append(name + ":")
    def snapshot(self):
        return (list(self.hist), self.pos, [set(x) for x in self.lgkm])
    def restore(self, st):
        self.hist, self.pos, self.lgkm = list(st[0]), st[1], [set(x) for x in st[2]]
    def skip_begin(self):
        self._sk = (list(self.hist), self.pos, len(self.lgkm))
    def skip_end(self, label):
        h0, p0, nl = self._sk
        assert nl == len(self.lgkm)
        inner = [(p, p0 - (self.pos - a)) for p, a in self.hist if a > p0]
        self.hist = h0 + inner
        self.pos = p0
        self.label(label)
    def _need(self, ins):
        need = 0
        rd, wr, sc = set(ins.rd), set(ins.wr), set(ins.srcc)
        for p, at in self.hist:
            dist = self.pos - at
            req = 0
            pw, pr = set(p.wr), set(p.rd)
            if p.kind in VALUK:
                vw = {r for r in pw if r[0] in "va" and r != "vcc"}
                sw = {r for r in pw if r[0] == "s" or r == "vcc"}
                if ins.kind == "mfma" and vw & (rd | sc): req = max(req, 2)
                if ins.kind == "permlane" and vw & rd: req = max(req, 2)
                if ins.kind == "readlane" and vw & rd: req = max(req, 1)
                if p.kind == "trans" and ins.kind in ("valu", "permlane", "readlane") and vw & rd: req = max(req, 1)
                if ins.kind in VALUK and sw & rd: req = max(req, 2)
                if ins.kind in VMEMK and sw & rd: req = max(req, 5)
                if ins.kind == "salu" and sw & rd: req = max(req, 1)
                if "exec" in pw and ins.kind in ("mfma", "permlane", "readlane"): req = max(req, 4)
            elif p.kind == "mfma":
                raw_, ovl, war = (12, 10, 7) if p.passes == 8 else (8, 6, 3)
                if ins.kind == "mfma":
                    if pw & rd: req = max(req, raw_)
                    if pw & sc and p.wr != ins.srcc: req = max(req, ovl)
                    if pw & wr and p.wr != ins.srcc: req = max(req, ovl)
                elif ins.kind in VALUK or ins.kind in VMEMK or ins.kind in ("dsr", "dsw"):
                    if pw & (rd | wr): req = max(req, raw_)
                    if set(p.srcc) & wr: req = max(req, war)
            elif p.kind == "salu":
                if "m0" in pw and ins.kind == "dma": req = max(req, 1)
            elif p.kind == "vstore":
                if ins.kind in VALUK and pr & wr: req = max(req, 2)
                elif pr & wr and ins.kind != "salu": req = max(req, 1)
            need = max(need, req - dist)
        return need
    def _put(self, ins):
        self.lines.append("    " + ins.text)
        self.pos += ins.states
        self.hist.append((ins, self.pos))
        self.hist = [(p, a) for p, a in self.hist if self.pos - a < 24]
    def wait_lgkm(self, n):
        if len(self.lgkm) > n:
            self._put(raw(f"s_waitcnt lgkmcnt({n})"))
            self.lgkm = self.lgkm[len(self.lgkm) - n:] if n else []
    def __call__(self, *items):
        for ins in items:
            if isinstance(ins, (list, tuple)):
                self(*ins); continue
            if ins is None: continue
            if isinstance(ins, str):
                ins = raw(ins)
            if self.flt and not self.flt(ins): continue
            if ins.kind == "need":
                self.need(*ins.rd); continue
            if ins.kind == "lgwait":
                self.wait_lgkm(ins.states); continue
            if ins.kind == "hook":
                ins.text(); continue
            touch = set(ins.rd) | set(ins.wr) | set(ins.srcc)
            last = -1
            for k, d in enumerate(self.lgkm):
                if d & touch: last = k
            if last >= 0:
                self.log.append(f"[{self.tag}] auto lgkm({len(self.lgkm) - 1 - last}) before {ins.text}")
                self.wait_lgkm(len(self.lgkm) - 1 - last)
            if ins.kind in ("dsr", "dsw") and len(self.lgkm) >= 15:
                self.log.append(f"[{self.tag}] cap lgkm before {ins.text}")
                self.wait_lgkm(14)
            need = self._need(ins)
            if need > 0:
                self.nops += need
                self.log.append(f"[{self.tag}] nop {need} before {ins.text}")
                while need > 0:
                    k = min(need, 16)
                    self._put(raw(f"s_nop {k-1}", states=k)); need -= k
            m = re.match(r"s_waitcnt .*lgkmcnt\((\d+)\)", ins.text)
            if m:
                n = int(m.group(1))
                if len(self.lgkm) > n: self.lgkm = self.lgkm[len(self.lgkm) - n:] if n else []
            self._put(ins)
            if ins.kind == "dsr": self.lgkm.append(set(ins.wr))
            if ins.kind == "dsw": self.lgkm.append(set())
    def need(self, *specs):
        touch = set(regs(list(specs)))
        last = -1
        for k, d in enumerate(self.lgkm):
            if d & touch: last = k
        if last >= 0: self.wait_lgkm(len(self.lgkm) - 1 - last)
    def flush_hazards(self, n=12):
        need = 0
        for p, at in self.hist:
            if p.kind == "mfma": need = max(need, n - (self.pos - at))
        if need > 0:
            self._put(raw(f"s_nop {need-1}", states=need))

def weave(mf, fill, pre=0):
    out = []
    total = sum(c for c, _ in fill)
    k = 0; acc = 0.0
    while k < len(fill) and acc + fill[k][0] <= pre + 1e-9:
        out.append(fill[k][1]); acc += fill[k][0]; k += 1
    rest = total - acc
    n = len(mf)
    base = acc
    for i, m in enumerate(mf):
        out += m
        tgt = base + rest * (i + 1) / n
        while k < len(fill) and acc + fill[k][0] / 2 <= tgt + 1e-9:
            out.append(fill[k][1]); acc += fill[k][0]; k += 1
    while k < len(fill):
        out.append(fill[k][1]); k += 1
    return out

def cost(i):
    if i is None: return 0
    if isinstance(i, (list, tuple)): return sum(cost(x) for x in i)
    if i.kind == "trans": return 2
    if i.kind in ("need", "label", "hook"): return 0
    return 1
def flat(x):
    o = []
    for i in x:
        if i is None: continue
        if isinstance(i, (list, tuple)): o += flat(i)
        else: o.append(i)
    return o

class Gaps:
    def __init__(self, mfmas):
        self.m = list(mfmas)
        self.free1 = False
        n = len(self.m)
        self.sync = [[] for _ in range(n)]
        self.post = [[] for _ in range(n)]
        self.val = [[] for _ in range(n)]
        self.end = [[] for _ in range(n)]
    def load(self, g):
        c = cost(self.sync[g]) + cost(self.post[g]) + cost(self.val[g]) + cost(self.end[g])
        if self.free1:
            f = [i for i in flat(self.sync[g] + self.post[g]) if i.kind not in ("hook", "need")]
            if any(i.kind in ("salu", "lgwait", "other") for i in f): c -= 1
        return c
    def spread(self, items, g0, g1):
        n = g1 - g0 + 1
        for k, it in enumerate(items):
            self.post[g0 + (k * n) // len(items)].append(it)
    def fill(self, items, g0, g1, cap=6):
        total = sum(self.load(g) for g in range(g0, g1 + 1)) + sum(cost(i[0]) for i in items)
        per = max(total / (g1 - g0 + 1), 0)
        k = 0; acc = 0
        for g in range(g0, g1 + 1):
            acc += self.load(g)
            tgt = per * (g - g0 + 1)
            while k < len(items):
                ins, lo, hi = items[k]
                if lo is not None and g < lo: break
                forced = any(x[2] is not None and x[2] <= g for x in items[k:]) or g == g1
                if not forced:
                    if acc + cost(ins) / 2 > tgt + 1e-9: break
                    if self.load(g) + cost(ins) > max(cap, per + 1): break
                self.val[g].append(ins); acc += cost(ins); k += 1
        assert k == len(items), (k, len(items))
    def asap(self, items, g0, g1, cap=7):
        k = 0
        for g in range(g0, g1 + 1):
            while k < len(items):
                ins, lo, hi = items[k]
                if lo is not None and g < lo: break
                forced = any(x[2] is not None and x[2] <= g for x in items[k:]) or g == g1
                if not forced and self.load(g) + cost(ins) > cap: break
                self.val[g].append(ins); k += 1
        assert k == len(items)
    def waits(self, every=2, keep=2, g0=0, g1=None, prev=()):
        g1 = len(self.m) - 1 if g1 is None else g1
        cnt = lambda g: sum(1 for i in flat(self.post[g]) if i.kind == "dsr") if g >= 0 else (prev[g] if -g <= len(prev) else 0)
        for g in range(g0, g1 + 1, every):
            if any(i.kind == "other" and i.text == "s_barrier" for i in flat(self.sync[g])): continue
            self.sync[g].append(I("", "lgwait", states=sum(cnt(g - d) for d in range(1, keep + 1))))
    def emit(self, e, g0=0, g1=None):
        g1 = len(self.m) - 1 if g1 is None else g1
        for g in range(g0, g1 + 1):
            e(self.m[g], self.sync[g], self.post[g], self.val[g], self.end[g])
    def report(self):
        return " ".join(str(self.load(g)) for g in range(len(self.m)))
```

```python
import sys, struct
from emit import *

STAMP_OFF = 128 << 20
def f2u(x): return struct.unpack("<I", struct.pack("<f", x))[0]

vO, vS, vQ, vPV = 0, (0, 64), 32, 96
vL, vT, vNEGM, vOA, vVA, vKA, vKD, vVD, vOD = 192, 200, 208, 216, 224, 232, 236, 240, 242
vLANE, vFA, vFA2, vFP1, vFP2, vL16, vL16B, vCNT, vOUTA, vCA = 246, 247, 248, 249, 250, 251, 252, 253, 254, 255
vXD, vWD, vXA, vWA, vSIG, vCL, vONE, vZ4 = 160, 164, 168, 170, 178, 179, 180, 184
vKB, vVB = vL, vNEGM
aFR, aF = 160, 224
v = lambda b, n=1: R("v", b, n)
a_ = lambda b, n=1: R("a", b, n)
s = lambda b, n=1: R("s", b, n)
sHD = 4
sTX, sMASK = 12, 13
sDBG, sX, sW_, sK, sV, sWO, sWS, sOUT = 16, 20, 24, 28, 32, 36, 40, 44
sWV, sB, sH, sG, sHH, sBB, sROT, sJ = 48, 49, 50, 51, 52, 53, 54, 55
sT0, sT1, sT2, sT3 = 56, 57, 58, 59
sW4K, sKOFF, sVOFF, sIT, sTHR, sSPIN, sOB, sPB = 60, 61, 62, 63, 64, 65, 66, 67
sPC = 68
sSTAMP = 70
MAIN = ("start", "q0", "k0", "loop", "lend", "v15", "ost", "f1", "p1", "gemm", "f2", "p2", "end")
LDS_X, LDS_W, LDS_K = 0, 49152, 98304
RING = (6, 7, 8, 9, 2, 5, 3, 4)
WS_P2, WS_F, WS_END = 8 << 20, 12 << 20, 13 << 20

HEAD = """\
;     S^T = K Q^T starts from -m (reference max as accumulator input); m starts as the first tile's
; All MFMA are 16x16x32 bf16. Written with my own generator script (schedule, waits, hazard padding)."""

def gen(path, stamps=False, thr=8.0, verbose=False, plan=(5, 7), capk=5, np_=None, gate=4, kl=(16, 24), vl=(24, 32), ne=2, gatev=99, xr=(1, 2, 4), row0=False, nol=False, pg=None, pgk=None, pg0=17, rot2=False, n14=1, wat=30, nack=2, vt=(0, 1, 2, 3, 4, 5)):
    e = Emitter()
    names = []
    def stamp(name):
        if stamps and (name in MAIN if stamps is True else name in stamps or name == "start"):
            names.append(name); i = len(names) - 1
            e(raw(f"{'s_memtime' if name.endswith('#') else 's_memrealtime'} s[{sSTAMP+2*i}:{sSTAMP+2*i+1}]"))
        if stamps and stamps is not True and name + "#" in stamps: stamp(name + "#")
    hstamp = lambda name: hook(lambda: stamp(name))
    def sec(t):
        e.tag = t[:12]; e.text(""); e.text("; ---- " + t)
    def newgaps(m):
        G = Gaps(m); G.free1 = True
        return G
    for l in HEAD.split("\n"): e.text(l)
    e.text("; @launch grid=(256,1,1) block=(256,1,1) lds=163840")
    e.text('.amdgcn_target "amdgcn-amd-amdhsa--gfx950"')
    e.text(".text"); e.text(f".globl {KN}"); e.text(".p2align 8"); e.text(f".type {KN},@function"); e.text(f"{KN}:")
    e(raw("s_load_dwordx16 s[4:19], s[0:1], 0"))
    e(salu("s_cmp_ge_u32", None, "s2", 256), raw("s_cbranch_scc1 L_end"))
    stamp("start")
    T = [v(vT + i) for i in range(8)]
    L = v(vLANE)
    e(valu("v_lshrrev_b32", T[0], 6, "v0"), valu("v_and_b32", L, 63, "v0"), valu("v_readfirstlane_b32", s(sWV), T[0]))
    sec("pull this kernel's code into L2: 4 lines per wave, shared out over the workgroups")
    e(raw(f"s_getpc_b64 {s(sPC, 2)}", "salu", wr=[s(sPC, 2)]))
    e.label("L_pc")
    e(salu("s_lshr_b32", s(sJ), "s2", 3), valu("v_lshlrev_b32", T[1], 7, T[0]), valu("v_lshl_add_u32", T[1], s(sJ), 2, T[1]), valu("v_add_lshl_u32", T[1], T[1], L, 7))
    e(valu("v_cmp_gt_u32", "vcc", "L_cold-L_pc", T[1]), salu("s_and_b32", s(sT0), "s2", 1), salu("s_and_b64", "exec", "vcc", 15), raw("s_cbranch_execz L_nopf"))
    e(raw(f"global_load_dword {v(vCNT)}, {T[1]}, {s(sPC, 2)}", "vload", rd=[T[1], s(sPC, 2)], wr=[v(vCNT)]))
    e.label("L_nopf")
    e(salu("s_mov_b64", "exec", -1))
    sec("ids; first k chunk = G + 4bg (dies that share x or Wq start at different chunks)")
    e(salu("s_bfe_u32", s(sG), "s2", (2 << 16) | 1), salu("s_lshr_b32", s(sBB), "s2", 6), salu("s_and_b32", s(sHH), s(sJ), 7),
      salu("s_lshl2_add_u32", s(sB), s(sT0), s(sBB)), salu("s_lshl3_add_u32", s(sH), s(sG), s(sHH)),
      salu("s_lshl2_add_u32" if xr == (1, 2, 4) else "s_lshl1_add_u32", s(sROT), s(sT0), s(sG)), salu("s_lshl_b32", s(sW4K), s(sWV), 12))
    if rot2: e(salu("s_add_u32", s(sROT), s(sBB), s(sHH)), salu("s_lshl2_add_u32", s(sROT), s(sROT), "s2"))
    sec("LDS-DMA source offsets (bank swizzle applied on the source side); piece p = 1 KB, lane i")
    e(valu("v_lshrrev_b32", T[1], 3, L), valu("v_lshrrev_b32", T[2], 4, L), valu("v_and_b32", T[3], 7, L), valu("v_and_b32", T[4], 15, L))
    e(valu("v_lshl_add_u32", v(vKD), T[0], 4, T[2]), valu("v_lshlrev_b32", v(vOD), 1, T[2]), valu("v_xor_b32", T[6], T[4], v(vOD)), valu("v_lshlrev_b32", v(vVD), 4, T[6]))
    e(valu("v_lshl_add_u32", v(vWD), v(vKD), 13, v(vVD)), valu("v_xor_b32", T[7], 128, v(vWD)))
    e(valu("v_add_u32", v(vWD + 1), 31744, v(vWD)), valu("v_add_u32", v(vWD + 2), 2 * 31744, T[7]), valu("v_add_u32", v(vWD + 3), 3 * 31744, T[7]))
    e(salu("s_lshr_b32", s(sT2), s(sG), 1), salu("s_lshl_b32", s(sT2), s(sT2), 14), salu("s_sub_u32", s(sT3), 2 * 7168 + 4096, s(sT2)), salu("s_add_u32", s(sT2), s(sT2), 4096))
    e(valu("v_lshl_add_u32", T[5], T[0], 5, T[1]), valu("v_lshlrev_b32", T[5], 10, T[5]), valu("v_xor_b32", T[6], T[3], T[2]), valu("v_lshl_add_u32", T[6], T[6], 4, T[5]))
    e(valu("v_xor_b32", T[7], 64, T[6]), valu("v_add_u32", T[7], 7168, T[7]))
    e(valu("v_add_u32", v(vXD), s(sT2), T[6]), valu("v_add_u32", v(vXD + 1), s(sT2), T[7]), valu("v_add_u32", v(vXD + 2), s(sT3), T[6]), valu("v_add_u32", v(vXD + 3), s(sT3), T[7]))
    e(salu("s_lshl_b32", s(sT0), s(sB), 17), salu("s_lshl_b32", s(sT1), s(sH), 8), salu("s_sub_u32", s(sW_ + 2), 4 << 20, s(sT1)),
      salu("s_mov_b32", s(sW_ + 3), "0x20000"), salu("s_mov_b32", s(sX + 2), 131072 + 4096), salu("s_mov_b32", s(sX + 3), "0x20000"))
    def xw_issue(st):
        z = st % 3
        return [salu("s_add_u32", s(sT2), s(sROT), st), salu("s_and_b32", s(sT2), s(sT2), 7), salu("s_add_u32", "m0", s(sW4K), LDS_W + z * 16384), salu("s_lshl_b32", s(sT3), s(sT2), 19)] + \
               [dma(v(vWD + p), s(sW_, 4), s(sT3), p * 1024) for p in range(4)] + \
               [salu("s_add_u32", "m0", s(sW4K), LDS_X + z * 16384), salu("s_lshl_b32", s(sT2), s(sT2), 7)] + \
               [dma(v(vXD + p), s(sX, 4), s(sT2), p * 1024) for p in range(4)]
    x0 = xw_issue(0)
    e(x0[:4])
    e(raw("s_waitcnt lgkmcnt(0)"))
    e(salu("s_add_u32", s(sW_), "s10", s(sT1)), salu("s_addc_u32", s(sW_ + 1), "s11", 0))
    e(x0[4:8])
    e(salu("s_add_u32", s(sX), "s4", s(sT0)), salu("s_addc_u32", s(sX + 1), "s5", 0), salu("s_sub_u32", s(sX), s(sX), 4096), salu("s_subb_u32", s(sX + 1), s(sX + 1), 0))
    e(x0[8:])
    sec("remaining set-up (overlaps the first loads): descriptors")
    def srd(base, plo, add, size):
        e(salu("s_add_u32", s(base), s(plo), add), salu("s_addc_u32", s(base + 1), s(plo + 1), 0),
          salu("s_mov_b32", s(base + 2), size), salu("s_mov_b32", s(base + 3), "0x20000"))
    srd(sOUT, 14, s(sT0), 131072)
    e(salu("s_lshl_b32", s(sT0), s(sB), 5), salu("s_add_u32", s(sT0), s(sT0), s(sH)), salu("s_lshl_b32", s(sT0), s(sT0), 18))
    srd(sK, 6, s(sT0), 262144); srd(sV, 8, s(sT0), 262144)
    e(salu("s_lshl_b32", s(sT0), s(sG), 20), salu("s_lshl_b32", s(sT1), s(sHH), 7), salu("s_add_u32", s(sT0), s(sT0), s(sT1)), salu("s_sub_u32", s(sT2), 1 << 20, s(sT1)))
    srd(sWO, 12, s(sT0), s(sT2))
    srd(sWS, 18, 0, WS_END)
    e(salu("s_mov_b32", s(sDBG + 2), 256), salu("s_mov_b32", s(sDBG + 3), "0x20000"))
    e(valu("v_xor_b32", T[7], v(vOD), T[3]), valu("v_lshl_add_u32", v(vOD), T[7], 4, T[5]), [valu("v_add_u32", v(vOD + p), p * 7168, v(vOD)) for p in range(1, 4)])
    e(valu("v_lshl_add_u32", v(vVD), v(vKD), 8, v(vVD)), valu("v_xor_b32", v(vVD + 1), 128, v(vVD)))
    e(valu("v_xor_b32", T[6], T[4], T[2]), valu("v_lshlrev_b32", T[6], 4, T[6]), valu("v_lshl_add_u32", v(vKD), v(vKD), 8, T[6]), [valu("v_xor_b32", v(vKD + p), 64 * p, v(vKD)) for p in range(1, 4)])
    e(valu("v_lshl_add_u32", T[6], T[4], 8, T[6]), valu("v_add_u32", v(vKA), LDS_K, T[6]), [valu("v_xor_b32", v(vKA + k), 64 * k, v(vKA)) for k in range(1, 4)])
    e([valu("v_subrev_u32", v(vKB + k), 65536, v(vKA + k)) for k in range(4)])
    e(salu("s_mov_b32", s(sHD), s(sHH)), salu("s_lshl_b32", s(sT1), s(sBB), 2))
    for i in range(1, 8):
        tab = hex(sum((1 + (i - 1 + 2 * bb) % 7) << (4 * bb) for bb in range(4)))
        e(salu("s_lshr_b32", s(sT0), tab, s(sT1)), salu("s_add_u32", s(sT0), s(sT0), s(sHH)), salu("s_and_b32", s(sHD + i), s(sT0), 7))
    sec("hand-off addresses. Flags: 128-byte lines, 4 KB block (b,G); line 4c = O of head c is out, line 4c+i = part from group G^i is out")
    e(salu("s_lshl2_add_u32", s(sT0), s(sB), s(sG)), salu("s_lshl2_add_u32", s(sT1), s(sT0), s(sWV)), salu("s_lshl_b32", s(sOB), s(sT1), 16))
    e(valu("v_and_b32", T[5], 3, L), valu("v_lshlrev_b32", v(vL16), 4, L), valu("v_bfrev_b32", T[7], 1), valu("v_add_u32", v(vL16B), 4096, v(vL16)))
    e(salu("s_lshl_b32", s(sT3), s(sB), 5), salu("s_lshl2_add_u32", s(sT1), s(sB), s(sWV)), salu("s_lshl_b32", s(sT1), s(sT1), 12), salu("s_add_u32", s(sT1), s(sT1), WS_F))
    e(valu("v_mov_b32", v(vCA), s(sT3)), valu("v_add_u32", v(vCL), s(sT1), v(vL16)))
    e(salu("s_or_b32", s(sT2), s(sWV), s(sH)), salu("s_cselect_b32", s(sT3), 4096, s(sT3)), valu("v_lshl_add_u32", v(vSIG), L, 12, s(sT3)))
    e(salu("s_lshl_b32", s(sT0), s(sT0), 12), salu("s_add_u32", s(sT0), s(sT0), WS_F), valu("v_lshl_add_u32", v(vFP1), T[3], 9, s(sT0)))
    e(salu("s_lshl_b32", s(sT2), s(sHH), 9), salu("s_add_u32", s(sT2), s(sT2), s(sT0)))
    e(valu("v_max_u32", T[6], 1, T[5]), valu("v_lshl_add_u32", v(vFP2), T[6], 7, s(sT2)))
    e(valu("v_add_u32", T[6], s(sT2), v(vL16)), valu("v_lshl_or_b32", v(vFA), T[1], 28, T[6]), valu("v_lshl_or_b32", v(vFA), T[0], 28, v(vFA)))
    e(valu("v_lshlrev_b32", v(vFA2), 12, T[1]), valu("v_xor_b32", T[6], T[6], v(vFA2)), valu("v_subrev_u32", T[1], 1, T[1]), valu("v_cmp_gt_u32", "vcc", 3, T[1]))
    e(salu("s_lshl3_add_u32", s(sT1), s(sB), s(sHH)), salu("s_lshl4_add_u32", s(sT1), s(sT1), s(sWV)), salu("s_lshl_b32", s(sPB), s(sT1), 12), salu("s_add_u32", s(sPB), s(sPB), WS_P2))
    e(valu("v_cndmask_b32", v(vFA2), T[7], T[6], "vcc"), valu("v_lshl_or_b32", v(vFA2), T[0], 28, v(vFA2)), valu("v_mov_b32", v(vONE), 1))
    sec("LDS read addresses")
    e(valu("v_lshrrev_b32", T[7], 1, T[4]), valu("v_xor_b32", T[7], T[7], T[2]), valu("v_lshlrev_b32", T[7], 4, T[7]), valu("v_lshl_add_u32", T[7], T[4], 7, T[7]),
      valu("v_add_u32", v(vXA), s(sW4K), T[7]), valu("v_xor_b32", v(vXA + 1), 64, v(vXA)))
    e(valu("v_lshl_add_u32", T[7], T[0], 5, T[4]), valu("v_lshlrev_b32", T[7], 10, T[7]), valu("v_lshl_add_u32", T[7], T[2], 3, T[7]))
    e(salu("s_lshr_b32", s(sT0), s(sG), 1), salu("s_lshl_b32", s(sT0), s(sT0), 14), salu("s_and_b32", s(sT2), s(sG), 1), salu("s_lshl1_add_u32", s(sT1), s(sHH), s(sT2)), salu("s_lshl_b32", s(sT1), s(sT1), 6),
      salu("s_add_u32", s(sT0), s(sT0), s(sT1)), valu("v_add_u32", v(vOUTA), s(sT0), T[7]), salu("s_lshl_b32", s(sT2), s(sT2), 1))
    e(valu("v_bfe_u32", T[1], L, 2, 2), valu("v_and_b32", T[3], 31, L), valu("v_lshlrev_b32", T[3], 3, T[3]))
    e(valu("v_lshl_add_u32", T[7], T[2], 3, T[1]), valu("v_lshl_add_u32", T[7], T[7], 8, T[3]), valu("v_add_u32", v(vWA), LDS_W, T[7]), [valu("v_xor_b32", v(vWA + k), 32 * k, v(vWA)) for k in range(1, 8)])
    e(valu("v_lshrrev_b32", T[6], 2, L), valu("v_lshl_add_u32", T[7], T[6], 8, T[3]), valu("v_add_u32", v(vVA), LDS_K, T[7]), [valu("v_xor_b32", v(vVA + k), 32 * k, v(vVA)) for k in range(1, 8)])
    e(valu("v_bfe_u32", T[7], L, 3, 2), valu("v_xor_b32", T[7], s(sT2), T[7]), valu("v_lshl_add_u32", T[7], T[7], 2, T[5]), valu("v_lshlrev_b32", T[7], 3, T[7]), valu("v_lshl_add_u32", v(vOA), T[6], 7, T[7]))
    e([valu("v_xor_b32", v(vOA + k), 32 * k, v(vOA)) for k in range(1, 4)], [valu("v_add_u32", v(vOA + 4 + k), 65536, v(vOA + k)) for k in range(4)])
    e(salu("s_lshl_b32", s(sTX), s(sBB), 14), salu("s_mov_b32", s(sMASK), 0))
    e(salu("s_mov_b32", s(sTHR), hex(f2u(thr))), salu("s_mov_b32", s(sSPIN), hex(f2u(1.4426950408889634 / 128 ** 0.5))))
    e(salu("s_cmp_lg_u32", None, s(sH), 0), raw("s_cbranch_scc1 L_noclr")); e.skip_begin()
    e([valu("v_mov_b32", v(vZ4 + r), 0) for r in range(4)], [bstore("buffer_store_dwordx4", v(vZ4, 4), v(vCL), s(sWS, 4), 0, k * 1024, "sc1") for k in range(4)])
    e.skip_end("L_noclr")
    e(xw_issue(1))

    cntld = bload("buffer_load_dword", v(vCNT), v(vCA), s(sDBG, 4), 0, 0, "sc1")
    def kv_issue(n):
        hd = [salu("s_add_u32", "m0", s(sW4K), RING[n & 7] * 16384), salu("s_xor_b32", s(sKOFF), s(sTX), (n & 15) * 16384)]
        return hd + [dma(v(vKD + p if n < 16 else vVD + (p & 1)), s(sK if n < 16 else sV, 4), s(sKOFF), p * 1024, "nt") for p in range(4)]
    def wo_issue(i):
        return [salu("s_add_u32", "m0", s(sW4K), i * 16384), salu("s_lshl_b32", s(sT3), s(sHD + i), 17)] + [dma(v(vOD + p), s(sWO, 4), s(sT3), p * 1024) for p in range(4)]
    def sync(n): return [raw(f"s_waitcnt vmcnt({n}) lgkmcnt(0)"), raw("s_barrier")]
    def place(G, items, pos, lo=0, hi=10 ** 9, shift=0):
        assert len(items) == len(pos) and all(a < b for a, b in zip(pos, pos[1:])), (len(items), pos)
        for x, g in zip(items, pos):
            if lo <= g < hi:
                (G.post if not isinstance(x, list) and x.kind in ("dma", "vload", "vstore") else G.sync)[g + shift].append(x)
    def lin(n, g0, g1): return [g0 + (k * (g1 - g0 + 1)) // n for k in range(n)]

    aXF = lambda st, ks, qb: a_(16 * (st & 1) + 8 * ks + 4 * qb, 4)
    aWF = lambda st, n: 32 + 64 * (st & 1) + 4 * n
    vQA = lambda db, qb: 64 + 8 * db + 4 * qb
    def q_order(st):
        return [(ks, db) for db in range(8) for ks in range(2)] if st == 7 else [(ks, db) for ks in range(2) for db in range(8)]
    def q_reads(st):
        z = st % 3
        o = []; seen = set()
        for n, (ks, db) in enumerate(q_order(st)):
            if ks not in seen:
                seen.add(ks); o += [dsr("ds_read_b128", aXF(st, ks, qb), v(vXA + ks), LDS_X + z * 16384 + qb * 2048) for qb in range(2)]
            for u in range(2):
                o.append(dsr("ds_read_b64_tr_b16", a_(aWF(st, n) + 2 * u, 2), v(vWA + db), z * 16384 + ks * 8192 + u * 1024))
        return o
    def q_mfmas(st):
        return [mfma16(v(vQA(db, qb), 4), a_(aWF(st, n), 4), aXF(st, ks, qb), 0 if (st == 0 and ks == 0) else v(vQA(db, qb), 4)) for n, (ks, db) in enumerate(q_order(st)) for qb in range(2)]
    vQF = lambda ks, qb: vQ + 8 * ks + 4 * qb
    def q_fin(db):
        o = []
        for qb in range(2):
            b = vQA(db, qb)
            o += [valu("v_mul_f32", v(b + r), s(sSPIN), v(b + r)) for r in range(4)]
            o += [valu("v_cvt_pk_bf16_f32", v(vQF(db >> 1, qb) + 2 * (db & 1) + t), v(b + 2 * t), v(b + 2 * t + 1)) for t in range(2)]
        return o
    def q_swap(ks):
        return [valu(op, v(vQF(ks, qb) + t), v(vQF(ks, qb) + 2 + t)) for op in ("v_permlane32_swap_b32", "v_permlane16_swap_b32") for qb in range(2) for t in range(2)]
    aKF = lambda n: a_(aFR + 4 * n, 4)
    vSB = lambda par, kb, qb: vS[par] + 8 * kb + 4 * qb
    korder = [(kb, ks) for kb in range(4) for ks in range(4)]
    q0order = [(kb, ks) for h in range(2) for ks in range(4) for kb in (2 * h, 2 * h + 1)]
    def k_reads(n, order=korder):
        u = RING[n & 7]
        return [dsr("ds_read_b128", aKF(4 * kb + ks), v((vKA if u >= 6 else vKB) + ks), (u - 2) % 4 * 16384 + kb * 4096) for kb, ks in order]
    def qk_mfmas(par, first, order=korder):
        return [mfma16(v(vSB(par, kb, qb), 4), aKF(4 * kb + ks), v(vQF(ks, qb), 4), (0 if first else v(vNEGM + 4 * qb, 4)) if ks == 0 else v(vSB(par, kb, qb), 4))
                for kb, ks in order for qb in range(2)]
    def max_ops(par):
        o = []
        r = lambda qb, k: v(vSB(par, k >> 2, qb) + (k & 3))
        for qb in range(2): o.append((valu("v_max3_f32", T[qb], r(qb, 0), r(qb, 1), r(qb, 2)), 0))
        for k in range(3, 15, 2):
            for qb in range(2): o.append((valu("v_max3_f32", T[qb], T[qb], r(qb, k), r(qb, k + 1)), (k + 1) >> 2))
        return o
    last = lambda par, qb: v(vSB(par, 3, qb) + 3)
    def xlanes(op):
        o = []
        for sw in ("v_permlane16_swap_b32", "v_permlane32_swap_b32"):
            o += [valu("v_mov_b32", T[2], T[0]), valu("v_mov_b32", T[3], T[1]), valu(sw, T[0], T[2]), valu(sw, T[1], T[3]), valu(op, T[0], T[0], T[2]), valu(op, T[1], T[1], T[3])]
        return o
    aVF = lambda j, db: aFR + 4 * (8 * j + db)
    at_ = [t for t in range(16) if t not in vt]
    pbase = lambda t: vPV + 16 * vt.index(t) if t in vt else 16 * at_.index(t)
    PF = lambda t, j, qb: (v if t in vt else a_)(pbase(t) + 8 * j + 4 * qb, 4)
    def soft(t):
        par = t & 1
        regs_ = [(kb, qb, r) for kb in range(4) for qb in range(2) for r in range(4)]
        ex = [(valu("v_exp_f32", v(vSB(par, kb, qb) + r), v(vSB(par, kb, qb) + r)), kb) for kb, qb, r in regs_]
        o = ex[:3]; pend = []
        for k in range(0, 32, 2):
            kb, qb, r = regs_[k]
            d = 8 * (kb >> 1) + 4 * qb + 2 * (kb & 1) + (r >> 1)
            tmp = T[6 + ((k >> 1) & 1)]
            o.append((valu("v_cvt_pk_bf16_f32", v(pbase(t) + d) if t in vt else tmp, v(vSB(par, kb, qb) + r), v(vSB(par, kb, qb) + r + 1)), kb))
            o += ex[k + 3:k + 4] + pend + ex[k + 4:k + 5]
            pend = [] if t in vt else [(raw(f"v_accvgpr_write_b32 a{pbase(t) + d}, {tmp}", "valu", rd=[tmp], wr=[f"a{pbase(t) + d}"]), 3)]
        return o + pend
    def v_reads(n, order):
        un = RING[n & 7]
        return [dsr("ds_read_b64_tr_b16", a_(aVF(j, db) + 2 * u, 2), v((vVA if un >= 6 else vVB) + db), (un - 2) % 4 * 16384 + j * 8192 + u * 4096) for j, db in order for u in range(2)]
    vOB = lambda db, qb: vO + 8 * db + 4 * qb
    def pv_mfmas(t, order):
        return [mfma16(v(vOB(db, qb), 4), a_(aVF(j, db), 4), PF(t, j, qb), 0 if t == 0 and j == 0 else v(vOB(db, qb), 4)) for j, db, qb in order]
    def l_mfmas(t):
        return [mfma16(v(vL + 4 * qb, 4), v(vKD, 4), PF(t, j, qb), 0 if t == 0 and j == 0 else v(vL + 4 * qb, 4)) for j in range(2) for qb in range(2)]
    jd = [(j, db) for j in range(2) for db in range(8)]
    jdq = [(j, db, qb) for j, db in jd for qb in range(2)]
    rare, resc = [], []
    def branch(t):
        e(raw(f"s_cbranch_vccnz L_rare{t}")); rare.append((t, e.snapshot())); e.label(f"L_back{t}")
    def rescale(t):
        e(salu("s_bitcmp1_b32", None, s(sMASK), t), raw(f"s_cbranch_scc1 L_resc{t}")); resc.append((t, e.snapshot())); e.label(f"L_rback{t}")
    SY, RL = 22, 17
    ms = [m for st in range(8) for m in q_mfmas(st)]
    g0 = {}
    for n in range(31):
        g0[n] = len(ms)
        ms += qk_mfmas(n & 1, n == 0, q0order if n == 0 else korder) if n < 16 else l_mfmas(n - 16) + pv_mfmas(n - 16, jdq)
    g0[31] = len(ms)
    G = newgaps(ms)
    sec("Q projection: 8 steps; each barrier publishes the next step's tiles and frees the slot read last")
    iss = {st: xw_issue(st + 2) if st < 6 else [] for st in range(8)}
    iss[1] = [bstore("buffer_store_dword", v(vONE), v(vSIG), s(sDBG, 4), 0, 0, "sc1")] + iss[1]
    pp = dict(plan) if isinstance(plan, dict) else {st: 4 * list(plan).count(st) for st in plan}
    npre = 0
    for st in sorted(pp):
        for i in range(pp[st]):
            c, p = divmod(npre, 4)
            assert c < 4 or (c < 6 and st >= 6)
            it = kv_issue(c)
            iss[st] = iss[st] + (it[:2] if p == 0 or i == 0 else []) + [it[2 + p]]; npre += 1
    cnt = {st: (8 if st < 7 else 0) + (st == 2) + sum(k for p, k in pp.items() if min(st - 2, 5) <= p < st) for st in range(1, 8)}
    r0 = q_reads(0)
    e(salu("s_cmp_eq_u32", None, s(sH), 0), raw("s_cbranch_scc1 L_clw"), raw("s_waitcnt vmcnt(8)"))
    e.label("L_clw")
    e(sync(12)); stamp("q0")
    e(r0[:12], need(aXF(0, 0, 1), a_(aWF(0, 0), 8)))
    G.spread(r0[12:], 0, RL)
    place(G, iss[0], lin(len(iss[0]), 0, SY - 1))
    for st in range(1, 8):
        g = 32 * (st - 1) + SY
        G.sync[g] = sync(cnt[st]) + [hstamp(f"q{st}")]
        G.spread(q_reads(st), g, 32 * st + RL)
        if iss[st]: place(G, iss[st], lin(len(iss[st]), g + 1, g + 30))
    if np_ is None: np_ = [4] * (32 - npre // 4)
    np_ = list(np_) + [0] * 31
    nxt = npre
    worder = (1, 2, 0, 3, 4, 5, 6, 7) if n14 == 1 else (6, 7, 0, 1, 2, 5, 3, 4)
    nwo = 0
    for n in range(31):
        g = g0[n] - (10 if n < 16 else 6)
        assert nxt >= 4 * (n + 1)
        young = min(nxt - 4 * (n + 1) + 4 * nwo, ((gate[min(n, len(gate) - 1)] if isinstance(gate, tuple) else gate) if n < 16 else gatev) if n > 0 else 99) + (n == 25)
        G.sync[g] = [raw(f"s_waitcnt vmcnt({young})"), raw("s_barrier")] + ([hstamp("k0")] if n == 0 else []) + ([hstamp("lend")] if n == 30 else []) + [hstamp(f"c{n}")]
        G.spread(k_reads(n, q0order if n == 0 else korder) if n < 16 else v_reads(n, jd), g, g + 31)
        if n == 24:
            assert nxt >= 104
            G.post[g].append(cntld)
        k = min(np_[n], 128 - nxt)
        late = kl if n < 16 else vl
        pos = [3 + i for i in range(min(k, ne))] + (lin(k - ne, late[0], late[1]) if k > ne else [])
        pgn = pg if n >= pg0 else pgk
        if pgn is not None and k: pos = lin(k, 3, 3 + (31 if n < 15 else 35))
        prev = 0
        for i in range(k):
            c, p = divmod(nxt, 4)
            assert c - n <= 6 and (c & 7 != 7 or n >= 1)
            it = kv_issue(c)
            pos[i] = max(pos[i], prev + (3 if p == 0 else 1))
            if p == 0: place(G, it[:2], [g + pos[i] - 2, g + pos[i] - 1])
            if pgn is not None: G.sync[g + pos[i]].append(raw(f"s_waitcnt vmcnt({pgn})"))
            place(G, [it[2 + p]], [g + pos[i]])
            prev = pos[i]; nxt += 1
        assert prev < (32 if n < 15 else 36)
        if n >= wat and nwo < n14:
            assert k == 0 and nxt == 128 and worder[nwo] not in [RING[c & 7] for c in range(n - 1, 32)]
            place(G, wo_issue(worder[nwo]), lin(6, g + 6, g + 34)); nwo += 1
    assert nxt == 128 and np_[30] == 0 and nwo == n14
    G.waits(4, 4, g0=0, prev=())
    fin = []
    for db in range(8):
        dl = 256 + 4 * (db >> 1) - 2
        fin += [(x, 224 + 4 * db + 6, dl) for x in q_fin(db)]
        if db & 1: fin += [(x, None, dl) for x in q_swap(db >> 1)]
    G.asap(fin + [(x, 276, None) for x, kb in max_ops(0) if kb < 2], 228, 287, cap=5)
    def first():
        sec("first tile: true row max becomes the reference")
        e([x for x, kb in max_ops(0) if kb >= 2], [valu("v_max_f32", T[qb], T[qb], last(0, qb)) for qb in range(2)], xlanes("v_max_f32"))
        e([valu("v_sub_f32", v(vNEGM + i), 0, T[i >> 2]) for i in range(8)])
        stamp("loop")
        sec("K pass: QK(t+1) under the max check, exp and pack of tile t")
    G.end[287].append(hook(first))
    carry = []
    CH = 5
    for t in range(16):
        a, b = g0[t + 1], g0[t + 2] - 1
        par = t & 1
        sf = soft(t)
        if t == 0:
            add = [[(valu("v_add_f32", v(vSB(0, kb, qb) + r), v(vSB(0, kb, qb) + r), v(vNEGM + 4 * qb)), kb) for qb in range(2) for r in range(4)] for kb in range(4)]
            o = add[0] + add[1][:4]; rest = add[1][4:] + add[2] + add[3]
            for x in sf: o += [x] + rest[:1]; rest = rest[1:]
            sf = o; lo = a
        else:
            tail = [x for x, kb in max_ops(par) if kb == 3] + [valu("v_max3_f32", T[2], T[0], T[1], last(par, 0)), valu("v_max_f32", T[2], T[2], last(par, 1)), valu("v_cmp_lt_f32", "vcc", s(sTHR), T[2])]
            G.fill([(x, None, None) for x in carry] + [(x, a + 2, None) for x in tail], a, a + CH, cap=capk)
            G.end[a + CH].append(hook(lambda t=t: branch(t)))
            lo = a + CH + 1
        ncar = 9 if t < 15 else 0
        carry = [x for x, kb in sf[len(sf) - ncar:]]
        assert all(kb == 3 for x, kb in sf[len(sf) - ncar:])
        items = [(x, None, None) for x, kb in sf[:len(sf) - ncar]]
        if t < 15:
            mx = [(x, a + 8 * kb + 11) for x, kb in max_ops(1 - par) if kb < 3]
            for x, g in mx:
                while G.load(g) >= 3 and g < b: g += 1
                G.val[g].append(x); mx_last = g
        if t == 14 and row0:
            items = [(x, None, None) for x in [valu("v_and_b32", v(vKD), 15, L), valu("v_min_u32", v(vKD), 1, v(vKD)), valu("v_subrev_u32", v(vKD), 1, v(vKD)), valu("v_and_b32", v(vKD), "0x3f803f80", v(vKD))] +
                     [valu("v_mov_b32", v(vKD + r), v(vKD)) for r in range(1, 4)]] + items
        elif t == 14: items = [(valu("v_mov_b32", v(vKD + r), 0 if nol else "0x3f803f80"), None, None) for r in range(4)] + items
        G.fill(items, lo, b, cap=capk)
    for k in range(8): G.val[g0[17] + 2 + k].append(valu("v_subrev_u32", v(vVB + k), 65536, v(vVA + k)))
    G.end[g0[16] - 1].append(hook(lambda: sec("V pass: l += 1^T P^T, O^T += V^T P^T")))
    for t in range(1, 15): G.end[g0[16 + t] - 1].append(hook(lambda t=t: rescale(t)))
    if verbose:
        for n in (1, 2, 7, 15, 16, 17): print(n, " ".join(str(G.load(g)) for g in range(g0[n], g0[n + 1])))
    G.emit(e, 0, 227)
    sec("Q * log2(e)/sqrt(Dh) -> bf16 B fragments; scores of the first tile")
    G.emit(e, 228)
    sec("last tile; normalise, pack and hand O out")
    rescale(15)
    e(l_mfmas(15))
    e(salu("s_lshl_b32", s(sT0), s(sHH), 13), salu("s_add_u32", s(sT0), s(sT0), s(sOB)))
    if row0: e(valu("v_mov_b32", T[0], v(vL)), valu("v_mov_b32", T[1], v(vL + 4)), xlanes("v_add_f32"))
    e(sync(4 * n14))
    stamp("v15")
    rds = v_reads(31, [(j, db) for db in range(8) for j in range(2)])
    vOF = lambda F, qb: vS[1] + 8 * F + 4 * qb
    def o_fin(db):
        o = []
        for qb in range(2):
            b = vOB(db, qb)
            o += [valu("v_mul_f32", v(b + r), T[4 + qb], v(b + r)) for r in range(4)]
            o += [valu("v_cvt_pk_bf16_f32", v(vOF(db >> 1, qb) + 2 * (db & 1) + t), v(b + 2 * t), v(b + 2 * t + 1)) for t in range(2)]
        return o
    o_st = lambda f: bstore("buffer_store_dwordx4", v(vS[1] + 4 * f, 4), v(vL16 if f < 4 else vL16B), s(sWS, 4), s(sT0), (f & 3) * 1024, "sc1")
    G = newgaps(pv_mfmas(15, [(j, db, qb) for db in range(8) for j in range(2) for qb in range(2)]))
    e(rds[:12], valu("v_rcp_f32", T[4], T[0] if row0 else v(vL)), valu("v_rcp_f32", T[5], T[1] if row0 else v(vL + 4)), need(a_(aVF(0, 0), 4), a_(aVF(1, 0), 4)))
    G.spread(rds[12:], 0, 9)
    G.waits(4, 2, g0=2, g1=14, prev=())
    for db in range(6):
        for k, x in enumerate(o_fin(db)): G.val[8 + 4 * db + k // 3].append(x)
    for F in range(2):
        for qb in range(2): G.post[16 + 8 * F + qb].append(o_st(2 * F + qb))
    G.emit(e)
    e(o_st(4), o_st(5), o_fin(6), o_fin(7)[:6], o_st(6), o_fin(7)[6:], o_st(7))
    stamp("ost")
    sec("first hand-off; the Wo slice streams into LDS meanwhile")
    assert RING[7] not in worder[n14:n14 + nack]
    e([wo_issue(i) for i in worder[n14:n14 + nack]])
    e(salu("s_mov_b32", s(sSPIN), 0), [valu("v_mov_b32", v(vNEGM + r), 1) for r in range(4)])
    e(raw(f"s_waitcnt vmcnt({4 * nack})"))
    e.label("L_cnt")
    e(valu("v_cmp_ne_u32", "vcc", 1, v(vCNT)), raw("s_cbranch_vccnz L_cnt2"))
    e.label("L_cntok")
    fst = lambda a: bstore("buffer_store_dwordx4", v(vNEGM, 4), a, s(sWS, 4), 0, 0, "sc1")
    e(raw("s_barrier"))
    stamp("f1")
    conv = [[salu("s_lshl_b32", s(sHD + i), s(sHD + i), 13), salu("s_add_u32", s(sHD + i), s(sHD + i), s(sOB))] for i in range(1, 8)]
    pld = lambda addr: bload("buffer_load_dword", T[0], addr, s(sWS, 4), 0, 0, "sc1")
    def poll(lbl, addr, pre=None):
        e(salu("s_cmp_lg_u32", None, s(sWV), 1), raw(f"s_cbranch_scc1 {lbl}_x"))
        if pre is not None: e(raw(f"s_waitcnt vmcnt({pre})"), valu("v_cmp_ne_u32", "vcc", 1, T[0]), raw(f"s_cbranch_vccz {lbl}_x"))
        e.label(lbl)
        e(pld(addr))
        e(salu("s_add_u32", s(sSPIN), s(sSPIN), 1), salu("s_cmp_ge_u32", None, s(sSPIN), 1 << 20), raw(f"s_cbranch_scc1 {lbl}_x"))
        e(raw("s_waitcnt vmcnt(0)"), valu("v_cmp_ne_u32", "vcc", 1, T[0]), raw(f"s_cbranch_vccnz {lbl}"))
        e.label(lbl + "_x")
    e(fst(v(vFA)), [wo_issue(i) for i in worder[n14 + nack:]], conv)
    poll("L_poll1", v(vFP1))
    e(raw("s_waitcnt vmcnt(0)"), raw("s_barrier"))
    stamp("p1")
    sec("output projection over the group's 8 heads; the three parts that are handed on first, the own part last")
    aOF = lambda i, f: a_(32 * i + 4 * f, 4)
    vAC = lambda nb, qb: 16 * qb + 4 * nb
    both = (0, 1)
    seq = [(0, F, nb, both) for F in range(4) for nb in range(4)]
    seq += [(i, F, nb, both if nb > 1 else (1,)) for i in range(1, 8) for F in range(4) for nb in (3, 2, 1, 0)]
    seq += [(i, F, nb, (0,)) for i in range(1, 8) for F in range(4) for nb in range(2)]
    mseq = [(n, i, F, nb, qb) for n, (i, F, nb, qbs) in enumerate(seq) for qb in qbs]
    fgap = {}
    for g, x in enumerate(mseq): fgap.setdefault(x[0], g)
    vWF = lambda n: 96 + 4 * (n % 16)
    def wo_read(n, u):
        i, F, nb, _ = seq[n]
        return dsr("ds_read_b64_tr_b16", v(vWF(n) + 2 * u, 2), v(vOA + nb + 4 * (i >> 2)), (i & 3) * 16384 + F * 4096 + u * 2048)
    loads = [bload("buffer_load_dwordx4", aOF(i, f), v(vL16 if f < 4 else vL16B), s(sWS, 4), s(sHD + i), (f & 3) * 1024, "sc1") for i in range(1, 8) for f in range(8)]
    G = newgaps([mfma16(v(vAC(nb, qb), 4), v(vWF(n), 4), v(vOF(F, qb), 4) if i == 0 else aOF(i, 2 * F + qb), 0 if (i == 0 and F == 0) else v(vAC(nb, qb), 4))
                 for n, i, F, nb, qb in mseq])
    LA, N0, OLEAD = 5, 8, 10
    gp = 0
    for n in range(LA, len(seq)):
        for u in range(2):
            gp = max(gp, fgap[n] - (10 if fgap[n] < 204 else 7) + (u if len(seq[n][3]) == 2 else 0))
            while len(G.post[gp]) >= 2: gp += 1
            G.post[gp].append(wo_read(n, u))
    G.waits(4, 4, g1=195); G.waits(2, 4, g0=196)
    e(loads[:N0])
    for n in range(LA): e(wo_read(n, 0), wo_read(n, 1))
    e.wait_lgkm(0)
    first_use = {}
    for g, (n, i, F, nb, qb) in enumerate(mseq):
        if i > 0: first_use.setdefault(8 * (i - 1) + 2 * F, g)
    at = {k: 32 + 3 * (k - OLEAD) + 1 for k in range(N0, 56)}
    for k in range(N0, 56): G.post[at[k]].append(loads[k])
    for k in range(0, 56, 2):
        g = first_use[k] - 1
        issued = N0 + sum(1 for kk in range(N0, 56) if at[kk] < g)
        assert issued >= k + 2
        G.sync[g].append(raw(f"s_waitcnt vmcnt({issued - (k + 2)})"))
    for i in range(4):
        for k, x in enumerate([salu("s_xor_b32", s(sT0 + i), s(sG), i), salu("s_lshl_b32", s(sT0 + i), s(sT0 + i), 14), salu("s_add_u32", s(sT0 + i), s(sT0 + i), s(sPB))]): G.sync[1 + 6 * i + 2 * k].append(x)
    pk = lambda i, u: [valu("v_cvt_pk_bf16_f32", v(32 + 4 * i + 2 * u + t), v(8 * i + 4 * u + 2 * t), v(8 * i + 4 * u + 2 * t + 1)) for t in range(2)]
    for (i, u), g in zip(((1, 1), (3, 1), (1, 0), (3, 0), (2, 1), (2, 0)), range(198, 204)): G.val[g] += pk(i, u)
    for i, g in ((1, 201), (3, 202), (2, 204)): G.post[g].append(bstore("buffer_store_dwordx4", v(32 + 4 * i, 4), v(vL16), s(sWS, 4), s(sT0 + i), i * 1024, "sc1"))
    G.end[204].append(hstamp("gemm"))
    G.sync[234] += [raw("s_waitcnt vmcnt(0)"), raw("s_barrier"), fst(v(vFA2)), hstamp("f2")]
    G.emit(e)
    sec("second hand-off: sum the four groups' parts and store")
    e(salu("s_mov_b32", s(sT1), "0xffff0000"))
    poll("L_poll2", v(vFP2))
    e(raw("s_barrier"))
    stamp("p2")
    e([bload("buffer_load_dwordx4", v(160 + 4 * i, 4), v(vL16), s(sWS, 4), s(sT0), (i + 1) * 1024, "sc1") for i in range(3)])
    for i in range(3):
        e(raw(f"s_waitcnt vmcnt({2 - i})"))
        for d in range(4): e(valu("v_lshlrev_b32", v(176 + 2 * d), 16, v(160 + 4 * i + d)), valu("v_and_b32", v(177 + 2 * d), s(sT1), v(160 + 4 * i + d)))
        for r in range(8): e(valu("v_add_f32", v(r), v(r), v(176 + r)))
    for t in range(4): e(valu("v_cvt_pk_bf16_f32", v(8 + t), v(2 * t), v(2 * t + 1)))
    for u in range(2): e(bstore("buffer_store_dwordx2", v(8 + 2 * u, 2), v(vOUTA), s(sOUT, 4), 0, 32 * u))
    if stamps:
        e(raw("s_waitcnt vmcnt(0)"))
        stamp("end")
        e(raw("s_waitcnt lgkmcnt(0)"))
        e(salu("s_cmp_lg_u32", None, s(sWV), 0), raw("s_cbranch_scc1 L_end"))
        e(salu("s_lshl_b32", s(sT0), "s2", 8), salu("s_add_u32", "s18", s(sWS), s(sT0)), salu("s_addc_u32", "s19", s(sWS + 1), 0),
          salu("s_add_u32", "s18", "s18", STAMP_OFF), salu("s_addc_u32", "s19", "s19", 0), salu("s_mov_b64", "exec", 1), valu("v_mov_b32", "v4", 0))
        for i in range(len(names)):
            e(valu("v_mov_b32", "v2", s(sSTAMP + 2 * i)), valu("v_mov_b32", "v3", s(sSTAMP + 2 * i + 1)))
            e(raw(f"global_store_dwordx2 v4, v[2:3], s[18:19] offset:{8*i}", "vstore", rd=["v[2:3]"]))
    e(raw("s_endpgm"))
    e.label("L_cold")
    acr = lambda d, a: raw(f"v_accvgpr_read_b32 {d}, a{a}", "valu", rd=[f"a{a}"], wr=[d])
    acw = lambda a, x: raw(f"v_accvgpr_write_b32 a{a}, {x}", "valu", rd=[x], wr=[f"a{a}"])
    for t, st in rare:
        sec(f"tile {t}: a row's max rose by more than the threshold: move the reference to the true running max, keep the factor")
        par = t & 1
        e.restore(st)
        e.label(f"L_rare{t}")
        e([valu("v_max3_f32", T[qb], T[qb], last(par, qb), 0) for qb in range(2)], xlanes("v_max_f32"))
        e([valu("v_exp_f32", T[4 + qb], "-" + T[qb]) for qb in range(2)])
        e([valu("v_sub_f32", v(vS[par] + i), v(vS[par] + i), T[(i >> 2) & 1]) for i in range(32)])
        if t < 15:
            e([valu("v_sub_f32", v(vNEGM + i), v(vNEGM + i), T[i >> 2]) for i in range(8)])
            e([valu("v_sub_f32", v(vS[1 - par] + i), v(vS[1 - par] + i), T[i >> 2]) for i in range(8)])
        e([acw(aF + 2 * t + qb, T[4 + qb]) for qb in range(2)], salu("s_bitset1_b32", s(sMASK), t))
        e(raw("s_nop 1", states=2), raw(f"s_branch L_back{t}"))
    for t, st in resc:
        sec(f"tile {t} was taken at a new reference: bring O and l to it")
        e.restore(st)
        e.label(f"L_resc{t}")
        e([acr(T[4 + qb], aF + 2 * t + qb) for qb in range(2)])
        e([valu("v_mul_f32", v(vL + i), v(vL + i), T[4 + (i >> 2)]) for i in range(8)])
        e([valu("v_mul_f32", v(vO + i), v(vO + i), T[4 + ((i >> 2) & 1)]) for i in range(64)])
        e(raw("s_nop 1", states=2), raw(f"s_branch L_rback{t}"))
    sec("the flag reset of this batch has not been reported yet: look again")
    e.label("L_cnt2")
    e(cntld, salu("s_add_u32", s(sSPIN), s(sSPIN), 1), salu("s_cmp_lt_u32", None, s(sSPIN), 1 << 20), raw("s_waitcnt vmcnt(0)"), raw("s_cbranch_scc1 L_cnt"), raw("s_branch L_cntok"))
    e.label("L_end")
    e(raw("s_endpgm"))
    for l in ['.section .rodata,"a"', ".p2align 6", f".amdhsa_kernel {KN}", "  .amdhsa_next_free_vgpr 512", "  .amdhsa_next_free_sgpr 102", "  .amdhsa_accum_offset 256",
              "  .amdhsa_group_segment_fixed_size 0", "  .amdhsa_kernarg_size 64", "  .amdhsa_user_sgpr_count 2", "  .amdhsa_user_sgpr_kernarg_segment_ptr 1",
              "  .amdhsa_system_sgpr_workgroup_id_x 1", ".end_amdhsa_kernel"]:
        e.text(l)
    open(path, "w").write("\n".join(e.lines) + "\n")
    return e, names

if __name__ == "__main__":
    e, n = gen("k_v8.s", verbose=True)
    print("nops", e.nops); print("\n".join(e.log))
```

```python
import sys
sys.path.insert(0,'work')
from gen8 import gen
sp = lambda n, a, b: [a + (i * (b - a + 1)) // n for i in range(n)]
def gv(extra, a=17, b=27):
    k = [4] * 30
    for x in sp(extra, a, b): k[x] -= 1
    return k
BEST8 = dict(np_=gv(8), plan=(2, 4, 6, 7), vl=(31, 32), gate=5, gatev=6, pg=5, vt=(0, 11, 12, 13, 14, 15))
if __name__ == "__main__":
    e, _ = gen("f8.s", **BEST8)
    print("\n".join(l for l in e.log if "tile" not in l[:8] and "Q proj" not in l))
    gen("f8_thr.s", **BEST8, thr=0.25)
```

```python
import sys
sys.path.insert(0,'work')
from gen8 import gen
sp = lambda n, a, b: [a + (i * (b - a + 1)) // n for i in range(n)]
def gv(extra, a=17, b=27):
    k = [4] * 30
    for x in sp(extra, a, b): k[x] -= 1
    return k
def give(at):
    k = [4] * 30
    for a in at: k[a] -= 1
    return k
BEST8 = dict(np_=give((13, 15, 18, 20, 21, 22, 24, 25, 27, 28)), plan={0: 2, 2: 4, 4: 4, 6: 4, 7: 4}, rot2=True, vl=(31, 32), gate=5, gatev=6, pg=5, vt=(0, 11, 12, 13, 14, 15))
if __name__ == "__main__":
    e, _ = gen("f8.s", **BEST8)
    print("\n".join(l for l in e.log if "tile" not in l[:8] and "Q proj" not in l))
    gen("f8_thr.s", **BEST8, thr=0.25)
```

```python
import sys, struct
from emit import *

STAMP_OFF = 128 << 20
def f2u(x): return struct.unpack("<I", struct.pack("<f", x))[0]

vO, vS, vQ, vPV = 0, (0, 64), 32, 96
vL, vT, vNEGM, vOA, vVA, vKA, vKD, vVD, vOD = 192, 200, 208, 216, 224, 232, 236, 240, 242
vLANE, vFA, vFA2, vFP1, vFP2, vL16, vL16B, vCNT, vOUTA, vCA = 246, 247, 248, 249, 250, 251, 252, 253, 254, 255
vXD, vWD, vXA, vWA, vSIG, vCL, vONE, vZ4 = 160, 164, 168, 170, 178, 179, 180, 184
vKB, vVB = vL, vNEGM
aFR, aF = 160, 224
v = lambda b, n=1: R("v", b, n)
a_ = lambda b, n=1: R("a", b, n)
s = lambda b, n=1: R("s", b, n)
sHD = 4
sTX, sMASK = 12, 13
sDBG, sX, sW_, sK, sV, sWO, sWS, sOUT = 16, 20, 24, 28, 32, 36, 40, 44
sWV, sB, sH, sG, sHH, sBB, sROT, sJ = 48, 49, 50, 51, 52, 53, 54, 55
sT0, sT1, sT2, sT3 = 56, 57, 58, 59
sW4K, sKOFF, sVOFF, sIT, sTHR, sSPIN, sOB, sPB = 60, 61, 62, 63, 64, 65, 66, 67
sPC = 68
sSTAMP = 70
MAIN = ("start", "q0", "k0", "loop", "lend", "v15", "ost", "f1", "p1", "gemm", "f2", "p2", "end")
LDS_X, LDS_W, LDS_K = 0, 49152, 98304
RING = (6, 7, 8, 9, 2, 5, 3, 4)
WS_P2, WS_F, WS_END = 8 << 20, 12 << 20, 13 << 20

HEAD = """\
; id -> bg = id&1, G = (id>>1)&3, hh = (id>>3)&7, bb = id>>6, b = 4bg+bb, h = 8G+hh.
;  2. attention over 16 tiles of 64 keys, tiles by LDS-DMA (8-slot ring): first all of K, then all of V.
;     S^T = K Q^T starts from -m (reference max as accumulator input); m starts as the first tile's
;  3. the 8 heads of group (b,G) hand their O (bf16) to each other through d_ws; workgroup hh
;     multiplies the group's [128 x 1024] O by Wo[1024G.., 64hh..64hh+63]
; Hand-offs: sc1 stores, vmcnt wait, barrier, sc1 flag store; sc1 poll, barrier, sc1 loads. The flags live in
; All MFMA are 16x16x32 bf16. Written with my own generator script (schedule, waits, hazard padding)."""

def gen(path, stamps=False, thr=8.0, verbose=False, plan=(5, 7), capk=5, np_=None, gate=4, kl=(16, 24), vl=(24, 32), ne=2, gatev=99, xr=(1, 2, 4), row0=False, nol=False, pg=None, pgk=None, pg0=17, rot2=False, n14=1, wat=30, nack=2, vt=(0, 1, 2, 3, 4, 5), pg1=99, wpos=(6, 34), f2g=234, txs="bb", gate0=99, gate7=99, bo=None, plan2=None, sel=3, skipl=False, halfv=False):
    e = Emitter()
    names = []
    def stamp(name):
        if stamps and (name in MAIN if stamps is True else name in stamps or name == "start"):
            names.append(name); i = len(names) - 1
            e(raw(f"{'s_memtime' if name.endswith('#') else 's_memrealtime'} s[{sSTAMP+2*i}:{sSTAMP+2*i+1}]"))
        if stamps and stamps is not True and name + "#" in stamps: stamp(name + "#")
    hstamp = lambda name: hook(lambda: stamp(name))
    def sec(t):
        e.tag = t[:12]; e.text(""); e.text("; ---- " + t)
    def newgaps(m):
        G = Gaps(m); G.free1 = True
        return G
    for l in HEAD.split("\n"): e.text(l)
    e.text("; @launch grid=(256,1,1) block=(256,1,1) lds=163840")
    e.text('.amdgcn_target "amdgcn-amd-amdhsa--gfx950"')
    e.text(".text"); e.text(f".globl {KN}"); e.text(".p2align 8"); e.text(f".type {KN},@function"); e.text(f"{KN}:")
    e(raw("s_load_dwordx16 s[4:19], s[0:1], 0"))
    e(salu("s_cmp_ge_u32", None, "s2", 256), raw("s_cbranch_scc1 L_end"))
    stamp("start")
    T = [v(vT + i) for i in range(8)]
    L = v(vLANE)
    e(valu("v_lshrrev_b32", T[0], 6, "v0"), valu("v_and_b32", L, 63, "v0"), valu("v_readfirstlane_b32", s(sWV), T[0]))
    sec("pull this kernel's code into L2: 4 lines per wave, shared out over the workgroups")
    e(raw(f"s_getpc_b64 {s(sPC, 2)}", "salu", wr=[s(sPC, 2)]))
    e.label("L_pc")
    e(salu("s_lshr_b32", s(sJ), "s2", 3), valu("v_lshlrev_b32", T[1], 7, T[0]), valu("v_lshl_add_u32", T[1], s(sJ), 2, T[1]), valu("v_add_lshl_u32", T[1], T[1], L, 7))
    e(valu("v_cmp_gt_u32", "vcc", "L_cold-L_pc", T[1]), salu("s_and_b32", s(sT0), "s2", 1), salu("s_and_b64", "exec", "vcc", 15), raw("s_cbranch_execz L_nopf"))
    e(raw(f"global_load_dword {v(vCNT)}, {T[1]}, {s(sPC, 2)}", "vload", rd=[T[1], s(sPC, 2)], wr=[v(vCNT)]))
    e.label("L_nopf")
    e(salu("s_mov_b64", "exec", -1))
    sec("ids; first k chunk = (id + 4(bb + hh)) mod 8: workgroups and dies that share x or Wq start at different chunks" if rot2 else "ids; first k chunk = G + 4bg")
    e(salu("s_bfe_u32", s(sG), "s2", (2 << 16) | 1), salu("s_lshr_b32", s(sBB), "s2", 6), salu("s_and_b32", s(sHH), s(sJ), 7),
      salu("s_lshl2_add_u32", s(sB), s(sT0), s(sBB)), salu("s_lshl3_add_u32", s(sH), s(sG), s(sHH)),
      None if rot2 else salu("s_lshl2_add_u32" if xr == (1, 2, 4) else "s_lshl1_add_u32", s(sROT), s(sT0), s(sG)), salu("s_lshl_b32", s(sW4K), s(sWV), 12))
    if rot2: e(salu("s_add_u32", s(sROT), s(sBB), s(sHH)), salu("s_lshl2_add_u32", s(sROT), s(sROT), "s2"))
    sec("LDS-DMA source offsets (bank swizzle applied on the source side); piece p = 1 KB, lane i")
    e(valu("v_lshrrev_b32", T[1], 3, L), valu("v_lshrrev_b32", T[2], 4, L), valu("v_and_b32", T[3], 7, L), valu("v_and_b32", T[4], 15, L))
    e(valu("v_lshl_add_u32", v(vKD), T[0], 4, T[2]), valu("v_lshlrev_b32", v(vOD), 1, T[2]), valu("v_xor_b32", T[6], T[4], v(vOD)), valu("v_lshlrev_b32", v(vVD), 4, T[6]))
    e(valu("v_lshl_add_u32", v(vWD), v(vKD), 13, v(vVD)), valu("v_xor_b32", T[7], 128, v(vWD)))
    e(valu("v_add_u32", v(vWD + 1), 31744, v(vWD)), valu("v_add_u32", v(vWD + 2), 2 * 31744, T[7]), valu("v_add_u32", v(vWD + 3), 3 * 31744, T[7]))
    e(salu("s_lshr_b32", s(sT2), s(sG), 1), salu("s_lshl_b32", s(sT2), s(sT2), 14), salu("s_sub_u32", s(sT3), 2 * 7168 + 4096, s(sT2)), salu("s_add_u32", s(sT2), s(sT2), 4096))
    e(valu("v_lshl_add_u32", T[5], T[0], 5, T[1]), valu("v_lshlrev_b32", T[5], 10, T[5]), valu("v_xor_b32", T[6], T[3], T[2]), valu("v_lshl_add_u32", T[6], T[6], 4, T[5]))
    e(valu("v_xor_b32", T[7], 64, T[6]), valu("v_add_u32", T[7], 7168, T[7]))
    e(valu("v_add_u32", v(vXD), s(sT2), T[6]), valu("v_add_u32", v(vXD + 1), s(sT2), T[7]), valu("v_add_u32", v(vXD + 2), s(sT3), T[6]), valu("v_add_u32", v(vXD + 3), s(sT3), T[7]))
    e(salu("s_lshl_b32", s(sT0), s(sB), 17), salu("s_lshl_b32", s(sT1), s(sH), 8), salu("s_sub_u32", s(sW_ + 2), 4 << 20, s(sT1)),
      salu("s_mov_b32", s(sW_ + 3), "0x20000"), salu("s_mov_b32", s(sX + 2), 131072 + 4096), salu("s_mov_b32", s(sX + 3), "0x20000"))
    def xw_issue(st):
        z = st % 3
        return [salu("s_add_u32", s(sT2), s(sROT), st), salu("s_and_b32", s(sT2), s(sT2), 7), salu("s_add_u32", "m0", s(sW4K), LDS_W + z * 16384), salu("s_lshl_b32", s(sT3), s(sT2), 19)] + \
               [dma(v(vWD + p), s(sW_, 4), s(sT3), p * 1024) for p in range(4)] + \
               [salu("s_add_u32", "m0", s(sW4K), LDS_X + z * 16384), salu("s_lshl_b32", s(sT2), s(sT2), 7)] + \
               [dma(v(vXD + p), s(sX, 4), s(sT2), p * 1024) for p in range(4)]
    x0 = xw_issue(0)
    e(x0[:4])
    e(raw("s_waitcnt lgkmcnt(0)"))
    e(salu("s_add_u32", s(sW_), "s10", s(sT1)), salu("s_addc_u32", s(sW_ + 1), "s11", 0))
    e(x0[4:8])
    e(salu("s_add_u32", s(sX), "s4", s(sT0)), salu("s_addc_u32", s(sX + 1), "s5", 0), salu("s_sub_u32", s(sX), s(sX), 4096), salu("s_subb_u32", s(sX + 1), s(sX + 1), 0))
    e(x0[8:])
    sec("remaining set-up (overlaps the first loads): descriptors")
    def srd(base, plo, add, size):
        e(salu("s_add_u32", s(base), s(plo), add), salu("s_addc_u32", s(base + 1), s(plo + 1), 0),
          salu("s_mov_b32", s(base + 2), size), salu("s_mov_b32", s(base + 3), "0x20000"))
    srd(sOUT, 14, s(sT0), 131072)
    e(salu("s_lshl_b32", s(sT0), s(sB), 5), salu("s_add_u32", s(sT0), s(sT0), s(sH)), salu("s_lshl_b32", s(sT0), s(sT0), 18))
    srd(sK, 6, s(sT0), 262144); srd(sV, 8, s(sT0), 262144)
    e(salu("s_lshl_b32", s(sT0), s(sG), 20), salu("s_lshl_b32", s(sT1), s(sHH), 7), salu("s_add_u32", s(sT0), s(sT0), s(sT1)), salu("s_sub_u32", s(sT2), 1 << 20, s(sT1)))
    srd(sWO, 12, s(sT0), s(sT2))
    srd(sWS, 18, 0, WS_END)
    e(salu("s_mov_b32", s(sDBG + 2), 256), salu("s_mov_b32", s(sDBG + 3), "0x20000"))
    e(valu("v_xor_b32", T[7], v(vOD), T[3]), valu("v_lshl_add_u32", v(vOD), T[7], 4, T[5]), [valu("v_add_u32", v(vOD + p), p * 7168, v(vOD)) for p in range(1, 4)])
    e(valu("v_lshl_add_u32", v(vVD), v(vKD), 8, v(vVD)), valu("v_xor_b32", v(vVD + 1), 128, v(vVD)))
    e(valu("v_xor_b32", T[6], T[4], T[2]), valu("v_lshlrev_b32", T[6], 4, T[6]), valu("v_lshl_add_u32", v(vKD), v(vKD), 8, T[6]), [valu("v_xor_b32", v(vKD + p), 64 * p, v(vKD)) for p in range(1, 4)])
    e(valu("v_lshl_add_u32", T[6], T[4], 8, T[6]), valu("v_add_u32", v(vKA), LDS_K, T[6]), [valu("v_xor_b32", v(vKA + k), 64 * k, v(vKA)) for k in range(1, 4)])
    e([valu("v_subrev_u32", v(vKB + k), 65536, v(vKA + k)) for k in range(4)])
    e(salu("s_mov_b32", s(sHD), s(sHH)), salu("s_lshl_b32", s(sT1), s(sBB), 2))
    for i in range(1, 8):
        tab = hex(sum((1 + (i - 1 + 2 * bb) % 7) << (4 * bb) for bb in range(4)))
        e(salu("s_lshr_b32", s(sT0), tab, s(sT1)), salu("s_add_u32", s(sT0), s(sT0), s(sHH)), salu("s_and_b32", s(sHD + i), s(sT0), 7))
    sec("hand-off addresses. Flags: 128-byte lines, 4 KB block (b,G); line 4c = O of head c is out, line 4c+i = part from group G^i is out")
    e(salu("s_lshl2_add_u32", s(sT0), s(sB), s(sG)), salu("s_lshl2_add_u32", s(sT1), s(sT0), s(sWV)), salu("s_lshl_b32", s(sOB), s(sT1), 16))
    e(valu("v_and_b32", T[5], 3, L), valu("v_lshlrev_b32", v(vL16), 4, L), valu("v_bfrev_b32", T[7], 1), valu("v_add_u32", v(vL16B), 4096, v(vL16)))
    e(salu("s_lshl_b32", s(sT3), s(sB), 5), salu("s_lshl2_add_u32", s(sT1), s(sB), s(sWV)), salu("s_lshl_b32", s(sT1), s(sT1), 12), salu("s_add_u32", s(sT1), s(sT1), WS_F))
    e(valu("v_mov_b32", v(vCA), s(sT3)), valu("v_add_u32", v(vCL), s(sT1), v(vL16)))
    e(salu("s_or_b32", s(sT2), s(sWV), s(sH)), salu("s_cselect_b32", s(sT3), 4096, s(sT3)), valu("v_lshl_add_u32", v(vSIG), L, 12, s(sT3)))
    e(salu("s_lshl_b32", s(sT0), s(sT0), 12), salu("s_add_u32", s(sT0), s(sT0), WS_F), valu("v_lshl_add_u32", v(vFP1), T[3], 9, s(sT0)))
    e(salu("s_lshl_b32", s(sT2), s(sHH), 9), salu("s_add_u32", s(sT2), s(sT2), s(sT0)))
    e(valu("v_max_u32", T[6], 1, T[5]), valu("v_lshl_add_u32", v(vFP2), T[6], 7, s(sT2)))
    e(valu("v_add_u32", T[6], s(sT2), v(vL16)), valu("v_lshl_or_b32", v(vFA), T[1], 28, T[6]), valu("v_lshl_or_b32", v(vFA), T[0], 28, v(vFA)))
    e(valu("v_lshlrev_b32", v(vFA2), 12, T[1]), valu("v_xor_b32", T[6], T[6], v(vFA2)), valu("v_subrev_u32", T[1], 1, T[1]), valu("v_cmp_gt_u32", "vcc", 3, T[1]))
    e(salu("s_lshl3_add_u32", s(sT1), s(sB), s(sHH)), salu("s_lshl4_add_u32", s(sT1), s(sT1), s(sWV)), salu("s_lshl_b32", s(sPB), s(sT1), 12), salu("s_add_u32", s(sPB), s(sPB), WS_P2))
    e(valu("v_cndmask_b32", v(vFA2), T[7], T[6], "vcc"), valu("v_lshl_or_b32", v(vFA2), T[0], 28, v(vFA2)), valu("v_mov_b32", v(vONE), 1))
    sec("LDS read addresses")
    e(valu("v_lshrrev_b32", T[7], 1, T[4]), valu("v_xor_b32", T[7], T[7], T[2]), valu("v_lshlrev_b32", T[7], 4, T[7]), valu("v_lshl_add_u32", T[7], T[4], 7, T[7]),
      valu("v_add_u32", v(vXA), s(sW4K), T[7]), valu("v_xor_b32", v(vXA + 1), 64, v(vXA)))
    e(valu("v_lshl_add_u32", T[7], T[0], 5, T[4]), valu("v_lshlrev_b32", T[7], 10, T[7]), valu("v_lshl_add_u32", T[7], T[2], 3, T[7]))
    e(salu("s_lshr_b32", s(sT0), s(sG), 1), salu("s_lshl_b32", s(sT0), s(sT0), 14), salu("s_and_b32", s(sT2), s(sG), 1), salu("s_lshl1_add_u32", s(sT1), s(sHH), s(sT2)), salu("s_lshl_b32", s(sT1), s(sT1), 6),
      salu("s_add_u32", s(sT0), s(sT0), s(sT1)), valu("v_add_u32", v(vOUTA), s(sT0), T[7]), salu("s_lshl_b32", s(sT2), s(sT2), 1))
    e(valu("v_bfe_u32", T[1], L, 2, 2), valu("v_and_b32", T[3], 31, L), valu("v_lshlrev_b32", T[3], 3, T[3]))
    e(valu("v_lshl_add_u32", T[7], T[2], 3, T[1]), valu("v_lshl_add_u32", T[7], T[7], 8, T[3]), valu("v_add_u32", v(vWA), LDS_W, T[7]), [valu("v_xor_b32", v(vWA + k), 32 * k, v(vWA)) for k in range(1, 8)])
    e(valu("v_lshrrev_b32", T[6], 2, L), valu("v_lshl_add_u32", T[7], T[6], 8, T[3]), valu("v_add_u32", v(vVA), LDS_K, T[7]), [valu("v_xor_b32", v(vVA + k), 32 * k, v(vVA)) for k in range(1, 8)])
    e(valu("v_bfe_u32", T[7], L, 3, 2), valu("v_xor_b32", T[7], s(sT2), T[7]), valu("v_lshl_add_u32", T[7], T[7], 2, T[5]), valu("v_lshlrev_b32", T[7], 3, T[7]), valu("v_lshl_add_u32", v(vOA), T[6], 7, T[7]))
    e([valu("v_xor_b32", v(vOA + k), 32 * k, v(vOA)) for k in range(1, 4)], [valu("v_add_u32", v(vOA + 4 + k), 65536, v(vOA + k)) for k in range(4)])
    if txs == "bb": e(salu("s_lshl_b32", s(sTX), s(sBB), 14))
    elif txs == "hh": e(salu("s_and_b32", s(sTX), s(sHH), 3), salu("s_lshl_b32", s(sTX), s(sTX), 14))
    elif txs == "bh": e(salu("s_lshl2_add_u32", s(sTX), s(sHH), s(sBB)), salu("s_and_b32", s(sTX), s(sTX), 15), salu("s_lshl_b32", s(sTX), s(sTX), 14))
    e(salu("s_mov_b32", s(sMASK), 0))
    if bo: e(salu("s_and_b32", s(sIT), s(sHH), 3))
    e(salu("s_mov_b32", s(sTHR), hex(f2u(thr))), salu("s_mov_b32", s(sSPIN), hex(f2u(1.4426950408889634 / 128 ** 0.5))))
    e(salu("s_cmp_lg_u32", None, s(sH), 0), raw("s_cbranch_scc1 L_noclr")); e.skip_begin()
    e([valu("v_mov_b32", v(vZ4 + r), 0) for r in range(4)], [bstore("buffer_store_dwordx4", v(vZ4, 4), v(vCL), s(sWS, 4), 0, k * 1024, "sc1") for k in range(4)])
    e.skip_end("L_noclr")
    e(xw_issue(1))

    cntld = bload("buffer_load_dword", v(vCNT), v(vCA), s(sDBG, 4), 0, 0, "sc1")
    def kv_issue(n):
        hd = [salu("s_add_u32", "m0", s(sW4K), RING[n & 7] * 16384), salu("s_xor_b32", s(sKOFF), s(sTX), (n & 15) * 16384)]
        return hd + [dma(v(vKD + p if n < 16 else vVD + (p & 1)), s(sK if n < 16 else sV, 4), s(sKOFF), p * 1024, "nt") for p in range(4)]
    def wo_issue(i):
        return [salu("s_add_u32", "m0", s(sW4K), i * 16384), salu("s_lshl_b32", s(sT3), s(sHD + i), 17)] + [dma(v(vOD + p), s(sWO, 4), s(sT3), p * 1024) for p in range(4)]
    def sync(n): return [raw(f"s_waitcnt vmcnt({n}) lgkmcnt(0)"), raw("s_barrier")]
    def place(G, items, pos, lo=0, hi=10 ** 9, shift=0):
        assert len(items) == len(pos) and all(a < b for a, b in zip(pos, pos[1:])), (len(items), pos)
        for x, g in zip(items, pos):
            if lo <= g < hi:
                (G.post if not isinstance(x, list) and x.kind in ("dma", "vload", "vstore") else G.sync)[g + shift].append(x)
    def lin(n, g0, g1): return [g0 + (k * (g1 - g0 + 1)) // n for k in range(n)]

    aXF = lambda st, ks, qb: a_(16 * (st & 1) + 8 * ks + 4 * qb, 4)
    aWF = lambda st, n: 32 + 64 * (st & 1) + 4 * n
    vQA = lambda db, qb: 64 + 8 * db + 4 * qb
    def q_order(st):
        return [(ks, db) for db in range(8) for ks in range(2)] if st == 7 else [(ks, db) for ks in range(2) for db in range(8)]
    def q_reads(st):
        z = st % 3
        o = []; seen = set()
        for n, (ks, db) in enumerate(q_order(st)):
            if ks not in seen:
                seen.add(ks); o += [dsr("ds_read_b128", aXF(st, ks, qb), v(vXA + ks), LDS_X + z * 16384 + qb * 2048) for qb in range(2)]
            for u in range(2):
                o.append(dsr("ds_read_b64_tr_b16", a_(aWF(st, n) + 2 * u, 2), v(vWA + db), z * 16384 + ks * 8192 + u * 1024))
        return o
    def q_mfmas(st):
        return [mfma16(v(vQA(db, qb), 4), a_(aWF(st, n), 4), aXF(st, ks, qb), 0 if (st == 0 and ks == 0) else v(vQA(db, qb), 4)) for n, (ks, db) in enumerate(q_order(st)) for qb in range(2)]
    vQF = lambda ks, qb: vQ + 8 * ks + 4 * qb
    def q_fin(db):
        o = []
        for qb in range(2):
            b = vQA(db, qb)
            o += [valu("v_mul_f32", v(b + r), s(sSPIN), v(b + r)) for r in range(4)]
            o += [valu("v_cvt_pk_bf16_f32", v(vQF(db >> 1, qb) + 2 * (db & 1) + t), v(b + 2 * t), v(b + 2 * t + 1)) for t in range(2)]
        return o
    def q_swap(ks):
        return [valu(op, v(vQF(ks, qb) + t), v(vQF(ks, qb) + 2 + t)) for op in ("v_permlane32_swap_b32", "v_permlane16_swap_b32") for qb in range(2) for t in range(2)]
    aKF = lambda n: a_(aFR + 4 * n, 4)
    vSB = lambda par, kb, qb: vS[par] + 8 * kb + 4 * qb
    korder = [(kb, ks) for kb in range(4) for ks in range(4)]
    q0order = [(kb, ks) for h in range(2) for ks in range(4) for kb in (2 * h, 2 * h + 1)]
    def k_reads(n, order=korder):
        u = RING[n & 7]
        return [dsr("ds_read_b128", aKF(4 * kb + ks), v((vKA if u >= 6 else vKB) + ks), (u - 2) % 4 * 16384 + kb * 4096) for kb, ks in order]
    def qk_mfmas(par, first, order=korder):
        return [mfma16(v(vSB(par, kb, qb), 4), aKF(4 * kb + ks), v(vQF(ks, qb), 4), (0 if first else v(vNEGM + 4 * qb, 4)) if ks == 0 else v(vSB(par, kb, qb), 4))
                for kb, ks in order for qb in range(2)]
    def max_ops(par):
        o = []
        r = lambda qb, k: v(vSB(par, k >> 2, qb) + (k & 3))
        for qb in range(2): o.append((valu("v_max3_f32", T[qb], r(qb, 0), r(qb, 1), r(qb, 2)), 0))
        for k in range(3, 15, 2):
            for qb in range(2): o.append((valu("v_max3_f32", T[qb], T[qb], r(qb, k), r(qb, k + 1)), (k + 1) >> 2))
        return o
    last = lambda par, qb: v(vSB(par, 3, qb) + 3)
    def xlanes(op):
        o = []
        for sw in ("v_permlane16_swap_b32", "v_permlane32_swap_b32"):
            o += [valu("v_mov_b32", T[2], T[0]), valu("v_mov_b32", T[3], T[1]), valu(sw, T[0], T[2]), valu(sw, T[1], T[3]), valu(op, T[0], T[0], T[2]), valu(op, T[1], T[1], T[3])]
        return o
    aVF = lambda j, db: aFR + 4 * (8 * j + db)
    at_ = [t for t in range(16) if t not in vt]
    pbase = lambda t: vPV + 16 * vt.index(t) if t in vt else 16 * at_.index(t)
    PF = lambda t, j, qb: (v if t in vt else a_)(pbase(t) + 8 * j + 4 * qb, 4)
    def soft(t):
        par = t & 1
        regs_ = [(kb, qb, r) for kb in range(4) for qb in range(2) for r in range(4)]
        ex = [(valu("v_exp_f32", v(vSB(par, kb, qb) + r), v(vSB(par, kb, qb) + r)), kb) for kb, qb, r in regs_]
        o = ex[:3]; pend = []
        for k in range(0, 32, 2):
            kb, qb, r = regs_[k]
            d = 8 * (kb >> 1) + 4 * qb + 2 * (kb & 1) + (r >> 1)
            tmp = T[6 + ((k >> 1) & 1)]
            o.append((valu("v_cvt_pk_bf16_f32", v(pbase(t) + d) if t in vt else tmp, v(vSB(par, kb, qb) + r), v(vSB(par, kb, qb) + r + 1)), kb))
            o += ex[k + 3:k + 4] + pend + ex[k + 4:k + 5]
            pend = [] if t in vt else [(raw(f"v_accvgpr_write_b32 a{pbase(t) + d}, {tmp}", "valu", rd=[tmp], wr=[f"a{pbase(t) + d}"]), 3)]
        return o + pend
    def v_reads(n, order):
        un = RING[n & 7]
        return [dsr("ds_read_b64_tr_b16", a_(aVF(j, db) + 2 * u, 2), v((vVA if un >= 6 else vVB) + db), (un - 2) % 4 * 16384 + j * 8192 + u * 4096) for j, db in order for u in range(2)]
    vOB = lambda db, qb: vO + 8 * db + 4 * qb
    def pv_mfmas(t, order):
        return [mfma16(v(vOB(db, qb), 4), a_(aVF(j, db), 4), PF(t, j, qb), 0 if t == 0 and j == 0 else v(vOB(db, qb), 4)) for j, db, qb in order]
    def l_mfmas(t):
        return [mfma16(v(vL + 4 * qb, 4), v(vKD, 4), PF(t, j, qb), 0 if t == 0 and j == 0 else v(vL + 4 * qb, 4)) for j in range(2) for qb in range(2)]
    jd = [(j, db) for j in range(2) for db in range(8)]
    jdq = [(j, db, qb) for j, db in jd for qb in range(2)]
    rare, resc = [], []
    def branch(t):
        e(raw(f"s_cbranch_vccnz L_rare{t}")); rare.append((t, e.snapshot())); e.label(f"L_back{t}")
    def rescale(t):
        e(salu("s_bitcmp1_b32", None, s(sMASK), t), raw(f"s_cbranch_scc1 L_resc{t}")); resc.append((t, e.snapshot())); e.label(f"L_rback{t}")
    SY, RL = 22, 17
    ms = [m for st in range(8) for m in q_mfmas(st)]
    g0 = {}
    for n in range(31):
        g0[n] = len(ms)
        ms += qk_mfmas(n & 1, n == 0, q0order if n == 0 else korder) if n < 16 else l_mfmas(n - 16) + pv_mfmas(n - 16, jdq)
    g0[31] = len(ms)
    G = newgaps(ms)
    sec("Q projection: 8 steps; each barrier publishes the next step's tiles and frees the slot read last")
    iss = {st: xw_issue(st + 2) if st < 6 else [] for st in range(8)}
    iss[1] = [bstore("buffer_store_dword", v(vONE), v(vSIG), s(sDBG, 4), 0, 0, "sc1")] + iss[1]
    pp = dict(plan) if isinstance(plan, dict) else {st: 4 * list(plan).count(st) for st in plan}
    npre = 0
    for st in sorted(pp):
        for i in range(pp[st]):
            c, p = divmod(npre, 4)
            assert c < 4 or (c < 6 and st >= 6)
            it = kv_issue(c)
            iss[st] = iss[st] + (it[:2] if p == 0 or i == 0 else []) + [it[2 + p]]; npre += 1
    cnt = {st: (8 if st < 7 else 0) + (st == 2) + sum(k for p, k in pp.items() if min(st - 2, 5) <= p < st) for st in range(1, 8)}
    cnt[7] = min(cnt[7], gate7)
    cnt2 = cnt
    if plan2:
        assert len(plan2) == len(plan)
        for st in range(8): iss[st] = [x for x in iss[st] if not (x.kind == "dma" and " nt " in x.text) and x.wr != [s(sKOFF)] and not (x.wr == ["m0"] and int(x.text.split()[-1]) >= LDS_K)]
        def cond(c, grp):
            def f():
                e(salu("s_bitcmp1_b32", None, "s2", sel), raw(f"s_cbranch_scc{1 - grp} L_pl{c}_{grp}")); e.skip_begin()
                e(kv_issue(c)); e.skip_end(f"L_pl{c}_{grp}")
            return [hook(f)]
        for c, (a, b) in enumerate(zip(plan, plan2)):
            if a == b: iss[a] = iss[a] + kv_issue(c)
            else: iss[a] = iss[a] + [cond(c, 0)]; iss[b] = iss[b] + [cond(c, 1)]
        cnt2 = {st: (8 if st < 7 else 0) + (st == 2) + 4 * sum(1 for p in plan2 if min(st - 2, 5) <= p < st) for st in range(1, 8)}
    def qsync(st):
        if cnt[st] == cnt2[st]: return sync(cnt[st])
        def f():
            hi = int(cnt2[st] > cnt[st])
            e(salu("s_bitcmp1_b32", None, "s2", sel), raw(f"s_cbranch_scc{hi} L_qw{st}")); e.skip_begin()
            e(raw(f"s_waitcnt vmcnt({min(cnt[st], cnt2[st])})")); e.skip_end(f"L_qw{st}")
        return [hook(f)] + sync(max(cnt[st], cnt2[st]))
    r0 = q_reads(0)
    e(salu("s_cmp_eq_u32", None, s(sH), 0), raw("s_cbranch_scc1 L_clw"), raw("s_waitcnt vmcnt(8)"))
    e.label("L_clw")
    e(sync(12)); stamp("q0")
    e(r0[:12], need(aXF(0, 0, 1), a_(aWF(0, 0), 8)))
    G.spread(r0[12:], 0, RL)
    place(G, iss[0], lin(len(iss[0]), 0, SY - 1))
    for st in range(1, 8):
        g = 32 * (st - 1) + SY
        G.sync[g] = qsync(st) + [hstamp(f"q{st}")]
        G.spread(q_reads(st), g, 32 * st + RL)
        if iss[st]: place(G, iss[st], lin(len(iss[st]), g + 1, g + 30))
    if np_ is None: np_ = [4] * (32 - npre // 4)
    np_ = list(np_) + [0] * 31
    nxt = npre
    worder = (1, 2, 0, 3, 4, 5, 6, 7) if n14 == 1 else (6, 7, 0, 1, 2, 5, 3, 4)
    nwo = 0
    for n in range(31):
        g = g0[n] - (10 if n < 16 else 6)
        assert nxt >= 4 * (n + 1)
        young = min(nxt - 4 * (n + 1) + 4 * nwo, ((gate[min(n, len(gate) - 1)] if isinstance(gate, tuple) else gate) if n < 16 else gatev) if n > 0 else gate0) + (n == 25)
        G.sync[g] = [raw(f"s_waitcnt vmcnt({young})"), raw("s_barrier")] + ([hstamp("k0")] if n == 0 else []) + ([hstamp("lend")] if n == 30 else []) + [hstamp(f"c{n}")]
        if bo and bo[0] <= n <= bo[1]:
            def w2(n=n, a=young, b=min(nxt - 4 * (n + 1), young + bo[2])):
                e(salu("s_cmp_eq_u32", None, s(sIT), 1), raw(f"s_cbranch_scc1 L_bo{n}")); e.skip_begin()
                e(raw(f"s_waitcnt vmcnt({a})")); e.skip_end(f"L_bo{n}")
                e(raw(f"s_waitcnt vmcnt({b})"))
            G.sync[g][0] = hook(w2)
        G.spread(k_reads(n, q0order if n == 0 else korder) if n < 16 else v_reads(n, jd), g, g + 31)
        if n == 24:
            assert nxt >= 104
            G.post[g].append(cntld)
        k = min(np_[n], 128 - nxt)
        late = kl if n < 16 else vl
        pos = [3 + i for i in range(min(k, ne))] + (lin(k - ne, late[0], late[1]) if k > ne else [])
        pgn = (pg if n < pg1 else None) if n >= pg0 else pgk
        if pgn is not None and k: pos = lin(k, 3, 3 + (31 if n < 15 else 35))
        prev = 0
        for i in range(k):
            c, p = divmod(nxt, 4)
            assert c - n <= 6 and (c & 7 != 7 or n >= 1)
            it = kv_issue(c)
            pos[i] = max(pos[i], prev + (3 if p == 0 else 1))
            if p == 0: place(G, it[:2], [g + pos[i] - 2, g + pos[i] - 1])
            if pgn is not None: G.sync[g + pos[i]].append(raw(f"s_waitcnt vmcnt({pgn})"))
            place(G, [it[2 + p]], [g + pos[i]])
            prev = pos[i]; nxt += 1
        assert prev < (32 if n < 15 else 36)
        if n >= wat and nwo < n14:
            assert k == 0 and nxt == 128 and worder[nwo] not in [RING[c & 7] for c in range(n - 1, 32)]
            place(G, wo_issue(worder[nwo]), lin(6, g + wpos[0], g + wpos[1])); nwo += 1
    assert nxt == 128 and np_[30] == 0 and nwo == n14
    G.waits(4, 4, g0=0, prev=())
    fin = []
    for db in range(8):
        dl = 256 + 4 * (db >> 1) - 2
        fin += [(x, 224 + 4 * db + 6, dl) for x in q_fin(db)]
        if db & 1: fin += [(x, None, dl) for x in q_swap(db >> 1)]
    G.asap(fin + [(x, 276, None) for x, kb in max_ops(0) if kb < 2], 228, 287, cap=5)
    def first():
        sec("first tile: true row max becomes the reference")
        e([x for x, kb in max_ops(0) if kb >= 2], [valu("v_max_f32", T[qb], T[qb], last(0, qb)) for qb in range(2)], xlanes("v_max_f32"))
        e([valu("v_sub_f32", v(vNEGM + i), 0, T[i >> 2]) for i in range(8)])
        stamp("loop")
        sec("K pass: QK(t+1) under the max check, exp and pack of tile t")
    G.end[287].append(hook(first))
    carry = []
    CH = 5
    for t in range(16):
        a, b = g0[t + 1], g0[t + 2] - 1
        par = t & 1
        sf = soft(t)
        if t == 0:
            add = [[(valu("v_add_f32", v(vSB(0, kb, qb) + r), v(vSB(0, kb, qb) + r), v(vNEGM + 4 * qb)), kb) for qb in range(2) for r in range(4)] for kb in range(4)]
            o = add[0] + add[1][:4]; rest = add[1][4:] + add[2] + add[3]
            for x in sf: o += [x] + rest[:1]; rest = rest[1:]
            sf = o; lo = a
        else:
            tail = [x for x, kb in max_ops(par) if kb == 3] + [valu("v_max3_f32", T[2], T[0], T[1], last(par, 0)), valu("v_max_f32", T[2], T[2], last(par, 1)), valu("v_cmp_lt_f32", "vcc", s(sTHR), T[2])]
            G.fill([(x, None, None) for x in carry] + [(x, a + 2, None) for x in tail], a, a + CH, cap=capk)
            G.end[a + CH].append(hook(lambda t=t: branch(t)))
            lo = a + CH + 1
        ncar = 9 if t < 15 else 0
        carry = [x for x, kb in sf[len(sf) - ncar:]]
        assert all(kb == 3 for x, kb in sf[len(sf) - ncar:])
        items = [(x, None, None) for x, kb in sf[:len(sf) - ncar]]
        if t < 15:
            mx = [(x, a + 8 * kb + 11) for x, kb in max_ops(1 - par) if kb < 3]
            for x, g in mx:
                while G.load(g) >= 3 and g < b: g += 1
                G.val[g].append(x); mx_last = g
        if t == 14 and row0:
            items = [(x, None, None) for x in [valu("v_and_b32", v(vKD), 15, L), valu("v_min_u32", v(vKD), 1, v(vKD)), valu("v_subrev_u32", v(vKD), 1, v(vKD)), valu("v_and_b32", v(vKD), "0x3f803f80", v(vKD))] +
                     [valu("v_mov_b32", v(vKD + r), v(vKD)) for r in range(1, 4)]] + items
        elif t == 14: items = [(valu("v_mov_b32", v(vKD + r), 0 if nol else "0x3f803f80"), None, None) for r in range(4)] + items
        G.fill(items, lo, b, cap=capk)
    for k in range(8): G.val[g0[17] + 2 + k].append(valu("v_subrev_u32", v(vVB + k), 65536, v(vVA + k)))
    G.end[g0[16] - 1].append(hook(lambda: sec("V pass: l += 1^T P^T, O^T += V^T P^T")))
    for t in range(1, 15): G.end[g0[16 + t] - 1].append(hook(lambda t=t: rescale(t)))
    if verbose:
        for n in (1, 2, 7, 15, 16, 17): print(n, " ".join(str(G.load(g)) for g in range(g0[n], g0[n + 1])))
    G.emit(e, 0, 227)
    sec("Q * log2(e)/sqrt(Dh) -> bf16 B fragments; scores of the first tile")
    if skipl or halfv:
        e.flt = lambda i: not ((skipl and i.kind == "mfma" and f"v[{vKD}:" in i.text) or (halfv and i.kind == "dsr" and "tr_b16" in i.text and e.tag.startswith("V pass") and int(i.wr[0][1:]) & 4))
    G.emit(e, 228)
    e.flt = None
    sec("last tile; normalise, pack and hand O out")
    rescale(15)
    e(l_mfmas(15))
    e(salu("s_lshl_b32", s(sT0), s(sHH), 13), salu("s_add_u32", s(sT0), s(sT0), s(sOB)))
    if row0: e(valu("v_mov_b32", T[0], v(vL)), valu("v_mov_b32", T[1], v(vL + 4)), xlanes("v_add_f32"))
    e(sync(4 * n14))
    stamp("v15")
    rds = v_reads(31, [(j, db) for db in range(8) for j in range(2)])
    vOF = lambda F, qb: vS[1] + 8 * F + 4 * qb
    def o_fin(db):
        o = []
        for qb in range(2):
            b = vOB(db, qb)
            o += [valu("v_mul_f32", v(b + r), T[4 + qb], v(b + r)) for r in range(4)]
            o += [valu("v_cvt_pk_bf16_f32", v(vOF(db >> 1, qb) + 2 * (db & 1) + t), v(b + 2 * t), v(b + 2 * t + 1)) for t in range(2)]
        return o
    o_st = lambda f: bstore("buffer_store_dwordx4", v(vS[1] + 4 * f, 4), v(vL16 if f < 4 else vL16B), s(sWS, 4), s(sT0), (f & 3) * 1024, "sc1")
    G = newgaps(pv_mfmas(15, [(j, db, qb) for db in range(8) for j in range(2) for qb in range(2)]))
    e(rds[:12], valu("v_rcp_f32", T[4], T[0] if row0 else v(vL)), valu("v_rcp_f32", T[5], T[1] if row0 else v(vL + 4)), need(a_(aVF(0, 0), 4), a_(aVF(1, 0), 4)))
    G.spread(rds[12:], 0, 9)
    G.waits(4, 2, g0=2, g1=14, prev=())
    for db in range(6):
        for k, x in enumerate(o_fin(db)): G.val[8 + 4 * db + k // 3].append(x)
    for F in range(2):
        for qb in range(2): G.post[16 + 8 * F + qb].append(o_st(2 * F + qb))
    G.emit(e)
    e(o_st(4), o_st(5), o_fin(6), o_fin(7)[:6], o_st(6), o_fin(7)[6:], o_st(7))
    stamp("ost")
    sec("first hand-off; the Wo slice streams into LDS meanwhile")
    assert RING[7] not in worder[n14:n14 + nack]
    e([wo_issue(i) for i in worder[n14:n14 + nack]])
    e(salu("s_mov_b32", s(sSPIN), 0), [valu("v_mov_b32", v(vNEGM + r), 1) for r in range(4)])
    e(raw(f"s_waitcnt vmcnt({4 * nack})"))
    e.label("L_cnt")
    e(valu("v_cmp_ne_u32", "vcc", 1, v(vCNT)), raw("s_cbranch_vccnz L_cnt2"))
    e.label("L_cntok")
    fst = lambda a: bstore("buffer_store_dwordx4", v(vNEGM, 4), a, s(sWS, 4), 0, 0, "sc1")
    e(raw("s_barrier"))
    stamp("f1")
    conv = [[salu("s_lshl_b32", s(sHD + i), s(sHD + i), 13), salu("s_add_u32", s(sHD + i), s(sHD + i), s(sOB))] for i in range(1, 8)]
    pld = lambda addr: bload("buffer_load_dword", T[0], addr, s(sWS, 4), 0, 0, "sc1")
    def poll(lbl, addr, pre=None):
        e(salu("s_cmp_lg_u32", None, s(sWV), 1), raw(f"s_cbranch_scc1 {lbl}_x"))
        if pre is not None: e(raw(f"s_waitcnt vmcnt({pre})"), valu("v_cmp_ne_u32", "vcc", 1, T[0]), raw(f"s_cbranch_vccz {lbl}_x"))
        e.label(lbl)
        e(pld(addr))
        e(salu("s_add_u32", s(sSPIN), s(sSPIN), 1), salu("s_cmp_ge_u32", None, s(sSPIN), 1 << 20), raw(f"s_cbranch_scc1 {lbl}_x"))
        e(raw("s_waitcnt vmcnt(0)"), valu("v_cmp_ne_u32", "vcc", 1, T[0]), raw(f"s_cbranch_vccnz {lbl}"))
        e.label(lbl + "_x")
    e(fst(v(vFA)), [wo_issue(i) for i in worder[n14 + nack:]], conv)
    poll("L_poll1", v(vFP1))
    e(raw("s_waitcnt vmcnt(0)"), raw("s_barrier"))
    stamp("p1")
    sec("output projection over the group's 8 heads; the three parts that are handed on first, the own part last")
    aOF = lambda i, f: a_(32 * i + 4 * f, 4)
    vAC = lambda nb, qb: 16 * qb + 4 * nb
    both = (0, 1)
    seq = [(0, F, nb, both) for F in range(4) for nb in range(4)]
    seq += [(i, F, nb, both if nb > 1 else (1,)) for i in range(1, 8) for F in range(4) for nb in (3, 2, 1, 0)]
    seq += [(i, F, nb, (0,)) for i in range(1, 8) for F in range(4) for nb in range(2)]
    mseq = [(n, i, F, nb, qb) for n, (i, F, nb, qbs) in enumerate(seq) for qb in qbs]
    fgap = {}
    for g, x in enumerate(mseq): fgap.setdefault(x[0], g)
    vWF = lambda n: 96 + 4 * (n % 16)
    def wo_read(n, u):
        i, F, nb, _ = seq[n]
        return dsr("ds_read_b64_tr_b16", v(vWF(n) + 2 * u, 2), v(vOA + nb + 4 * (i >> 2)), (i & 3) * 16384 + F * 4096 + u * 2048)
    loads = [bload("buffer_load_dwordx4", aOF(i, f), v(vL16 if f < 4 else vL16B), s(sWS, 4), s(sHD + i), (f & 3) * 1024, "sc1") for i in range(1, 8) for f in range(8)]
    G = newgaps([mfma16(v(vAC(nb, qb), 4), v(vWF(n), 4), v(vOF(F, qb), 4) if i == 0 else aOF(i, 2 * F + qb), 0 if (i == 0 and F == 0) else v(vAC(nb, qb), 4))
                 for n, i, F, nb, qb in mseq])
    LA, N0, OLEAD = 5, 8, 10
    gp = 0
    for n in range(LA, len(seq)):
        for u in range(2):
            gp = max(gp, fgap[n] - (10 if fgap[n] < 204 else 7) + (u if len(seq[n][3]) == 2 else 0))
            while len(G.post[gp]) >= 2: gp += 1
            G.post[gp].append(wo_read(n, u))
    G.waits(4, 4, g1=195); G.waits(2, 4, g0=196)
    e(loads[:N0])
    for n in range(LA): e(wo_read(n, 0), wo_read(n, 1))
    e.wait_lgkm(0)
    first_use = {}
    for g, (n, i, F, nb, qb) in enumerate(mseq):
        if i > 0: first_use.setdefault(8 * (i - 1) + 2 * F, g)
    at = {k: 32 + 3 * (k - OLEAD) + 1 for k in range(N0, 56)}
    for k in range(N0, 56): G.post[at[k]].append(loads[k])
    for k in range(0, 56, 2):
        g = first_use[k] - 1
        issued = N0 + sum(1 for kk in range(N0, 56) if at[kk] < g)
        assert issued >= k + 2
        G.sync[g].append(raw(f"s_waitcnt vmcnt({issued - (k + 2)})"))
    for i in range(4):
        for k, x in enumerate([salu("s_xor_b32", s(sT0 + i), s(sG), i), salu("s_lshl_b32", s(sT0 + i), s(sT0 + i), 14), salu("s_add_u32", s(sT0 + i), s(sT0 + i), s(sPB))]): G.sync[1 + 6 * i + 2 * k].append(x)
    pk = lambda i, u: [valu("v_cvt_pk_bf16_f32", v(32 + 4 * i + 2 * u + t), v(8 * i + 4 * u + 2 * t), v(8 * i + 4 * u + 2 * t + 1)) for t in range(2)]
    for (i, u), g in zip(((1, 1), (3, 1), (1, 0), (3, 0), (2, 1), (2, 0)), range(198, 204)): G.val[g] += pk(i, u)
    for i, g in ((1, 201), (3, 202), (2, 204)): G.post[g].append(bstore("buffer_store_dwordx4", v(32 + 4 * i, 4), v(vL16), s(sWS, 4), s(sT0 + i), i * 1024, "sc1"))
    G.end[204].append(hstamp("gemm"))
    G.sync[f2g] += [raw("s_waitcnt vmcnt(0)"), raw("s_barrier"), fst(v(vFA2)), hstamp("f2")]
    G.emit(e)
    sec("second hand-off: sum the four groups' parts and store")
    e(salu("s_mov_b32", s(sT1), "0xffff0000"))
    poll("L_poll2", v(vFP2))
    e(raw("s_barrier"))
    stamp("p2")
    e([bload("buffer_load_dwordx4", v(160 + 4 * i, 4), v(vL16), s(sWS, 4), s(sT0), (i + 1) * 1024, "sc1") for i in range(3)])
    for i in range(3):
        e(raw(f"s_waitcnt vmcnt({2 - i})"))
        for d in range(4): e(valu("v_lshlrev_b32", v(176 + 2 * d), 16, v(160 + 4 * i + d)), valu("v_and_b32", v(177 + 2 * d), s(sT1), v(160 + 4 * i + d)))
        for r in range(8): e(valu("v_add_f32", v(r), v(r), v(176 + r)))
    for t in range(4): e(valu("v_cvt_pk_bf16_f32", v(8 + t), v(2 * t), v(2 * t + 1)))
    for u in range(2): e(bstore("buffer_store_dwordx2", v(8 + 2 * u, 2), v(vOUTA), s(sOUT, 4), 0, 32 * u))
    if stamps:
        e(raw("s_waitcnt vmcnt(0)"))
        stamp("end")
        e(raw("s_waitcnt lgkmcnt(0)"))
        e(salu("s_cmp_lg_u32", None, s(sWV), 0), raw("s_cbranch_scc1 L_end"))
        e(salu("s_lshl_b32", s(sT0), "s2", 8), salu("s_add_u32", "s18", s(sWS), s(sT0)), salu("s_addc_u32", "s19", s(sWS + 1), 0),
          salu("s_add_u32", "s18", "s18", STAMP_OFF), salu("s_addc_u32", "s19", "s19", 0), salu("s_mov_b64", "exec", 1), valu("v_mov_b32", "v4", 0))
        for i in range(len(names)):
            e(valu("v_mov_b32", "v2", s(sSTAMP + 2 * i)), valu("v_mov_b32", "v3", s(sSTAMP + 2 * i + 1)))
            e(raw(f"global_store_dwordx2 v4, v[2:3], s[18:19] offset:{8*i}", "vstore", rd=["v[2:3]"]))
    e(raw("s_endpgm"))
    e.label("L_cold")
    acr = lambda d, a: raw(f"v_accvgpr_read_b32 {d}, a{a}", "valu", rd=[f"a{a}"], wr=[d])
    acw = lambda a, x: raw(f"v_accvgpr_write_b32 a{a}, {x}", "valu", rd=[x], wr=[f"a{a}"])
    for t, st in rare:
        sec(f"tile {t}: a row's max rose by more than the threshold: move the reference to the true running max, keep the factor")
        par = t & 1
        e.restore(st)
        e.label(f"L_rare{t}")
        e([valu("v_max3_f32", T[qb], T[qb], last(par, qb), 0) for qb in range(2)], xlanes("v_max_f32"))
        e([valu("v_exp_f32", T[4 + qb], "-" + T[qb]) for qb in range(2)])
        e([valu("v_sub_f32", v(vS[par] + i), v(vS[par] + i), T[(i >> 2) & 1]) for i in range(32)])
        if t < 15:
            e([valu("v_sub_f32", v(vNEGM + i), v(vNEGM + i), T[i >> 2]) for i in range(8)])
            e([valu("v_sub_f32", v(vS[1 - par] + i), v(vS[1 - par] + i), T[i >> 2]) for i in range(8)])
        e([acw(aF + 2 * t + qb, T[4 + qb]) for qb in range(2)], salu("s_bitset1_b32", s(sMASK), t))
        e(raw("s_nop 1", states=2), raw(f"s_branch L_back{t}"))
    for t, st in resc:
        sec(f"tile {t} was taken at a new reference: bring O and l to it")
        e.restore(st)
        e.label(f"L_resc{t}")
        e([acr(T[4 + qb], aF + 2 * t + qb) for qb in range(2)])
        e([valu("v_mul_f32", v(vL + i), v(vL + i), T[4 + (i >> 2)]) for i in range(8)])
        e([valu("v_mul_f32", v(vO + i), v(vO + i), T[4 + ((i >> 2) & 1)]) for i in range(64)])
        e(raw("s_nop 1", states=2), raw(f"s_branch L_rback{t}"))
    sec("the flag reset of this batch has not been reported yet: look again")
    e.label("L_cnt2")
    e(cntld, salu("s_add_u32", s(sSPIN), s(sSPIN), 1), salu("s_cmp_lt_u32", None, s(sSPIN), 1 << 20), raw("s_waitcnt vmcnt(0)"), raw("s_cbranch_scc1 L_cnt"), raw("s_branch L_cntok"))
    e.label("L_end")
    e(raw("s_endpgm"))
    for l in ['.section .rodata,"a"', ".p2align 6", f".amdhsa_kernel {KN}", "  .amdhsa_next_free_vgpr 512", "  .amdhsa_next_free_sgpr 102", "  .amdhsa_accum_offset 256",
              "  .amdhsa_group_segment_fixed_size 0", "  .amdhsa_kernarg_size 64", "  .amdhsa_user_sgpr_count 2", "  .amdhsa_user_sgpr_kernarg_segment_ptr 1",
              "  .amdhsa_system_sgpr_workgroup_id_x 1", ".end_amdhsa_kernel"]:
        e.text(l)
    open(path, "w").write("\n".join(e.lines) + "\n")
    return e, names

if __name__ == "__main__":
    e, n = gen("k_v8.s", verbose=True)
    print("nops", e.nops); print("\n".join(e.log))
```

```python
import sys
sys.path.insert(0,'work')
from gen8 import gen
from final8 import BEST8 as B, gv, give
C2 = {**B, **dict(rot2=False, plan=(0, 2, 4, 6, 7), np_=gv(12, 16, 27))}
gen("z_r2.s", **C2)
V = {"a": B, "c2": C2, "c2_nol": {**C2, "skipl": True}, "c2_zero": {**C2, "nol": True}, "c2_halfv": {**C2, "halfv": True}, "c2_both": {**C2, "halfv": True, "skipl": True}}
for k, kw in V.items():
    gen(f"z_{k}.s", **kw)
print(" ".join(f"z_{k}.s" for k in V))
```

```python
import sys, struct
from emit import *

STAMP_OFF = 128 << 20
def f2u(x): return struct.unpack("<I", struct.pack("<f", x))[0]

vO, vS, vQ, vPV = 0, (0, 64), 32, 96
vL, vT, vNEGM, vOA, vVA, vKA, vKD, vVD, vOD = 192, 200, 208, 216, 224, 232, 236, 240, 242
vLANE, vFA, vFA2, vFP1, vFP2, vL16, vL16B, vCNT, vOUTA, vCA = 246, 247, 248, 249, 250, 251, 252, 253, 254, 255
vXD, vWD, vXA, vWA, vSIG, vCL, vONE, vZ4 = 160, 164, 168, 170, 178, 179, 180, 184
vKB, vVB = vL, vNEGM
aFR, aF = 160, 224
v = lambda b, n=1: R("v", b, n)
a_ = lambda b, n=1: R("a", b, n)
s = lambda b, n=1: R("s", b, n)
sHD = 4
sTX, sMASK = 12, 13
sDBG, sX, sW_, sK, sV, sWO, sWS, sOUT = 16, 20, 24, 28, 32, 36, 40, 44
sWV, sB, sH, sG, sHH, sBB, sROT, sJ = 48, 49, 50, 51, 52, 53, 54, 55
sT0, sT1, sT2, sT3 = 56, 57, 58, 59
sW4K, sKOFF, sVOFF, sIT, sTHR, sSPIN, sOB, sPB = 60, 61, 62, 63, 64, 65, 66, 67
sPC = 68
sSTAMP = 70
MAIN = ("start", "q0", "k0", "loop", "lend", "v15", "ost", "f1", "p1", "gemm", "f2", "p2", "end")
LDS_X, LDS_W, LDS_K = 0, 49152, 98304
RING = (6, 7, 8, 9, 2, 5, 3, 4)
WS_P2, WS_F, WS_END = 8 << 20, 12 << 20, 13 << 20

HEAD = """\
; id -> bg = id&1, G = (id>>1)&3, hh = (id>>3)&7, bb = id>>6, b = 4bg+bb, h = 8G+hh.
;     S^T = K Q^T starts from -m (reference max as accumulator input); m starts as the first tile's
;  3. the 8 heads of group (b,G) hand their O (bf16) to each other through d_ws; workgroup hh
;     multiplies the group's [128 x 1024] O by Wo[1024G.., 64hh..64hh+63]
; All MFMA are 16x16x32 bf16. Written with my own generator script (schedule, waits, hazard padding)."""

def gen(path, stamps=False, thr=8.0, verbose=False, plan=(5, 7), capk=5, np_=None, gate=4, kl=(16, 24), vl=(24, 32), ne=2, gatev=99, xr=(1, 2, 4), row0=False, nol=False, pg=None, pgk=None, pg0=17, rot2=False, n14=1, wat=30, nack=2, vt=(0, 1, 2, 3, 4, 5), pg1=99, wpos=(6, 34), f2g=234, txs="bb", gate0=99, gate7=99, bo=None, plan2=None, sel=3, skipl=False, halfv=False, qeven=False, kfirst=False, SY=22, RL=17, bv=None, emud=False, pf2=None, wo_=None, OLEAD=10, N0=8, wpre=None, nobar=(), s15=None):
    e = Emitter()
    names = []
    def stamp(name):
        if stamps and (name in MAIN if stamps is True else name in stamps or name == "start"):
            names.append(name); i = len(names) - 1
            e(raw(f"{'s_memtime' if name.endswith('#') else 's_memrealtime'} s[{sSTAMP+2*i}:{sSTAMP+2*i+1}]"))
        if stamps and stamps is not True and name + "#" in stamps: stamp(name + "#")
    hstamp = lambda name: hook(lambda: stamp(name))
    def sec(t):
        e.tag = t[:12]; e.text(""); e.text("; ---- " + t)
    def newgaps(m):
        G = Gaps(m); G.free1 = True
        return G
    for l in HEAD.split("\n"): e.text(l)
    e.text("; @launch grid=(256,1,1) block=(256,1,1) lds=163840")
    e.text('.amdgcn_target "amdgcn-amd-amdhsa--gfx950"')
    e.text(".text"); e.text(f".globl {KN}"); e.text(".p2align 8"); e.text(f".type {KN},@function"); e.text(f"{KN}:")
    e(raw("s_load_dwordx16 s[4:19], s[0:1], 0"))
    e(salu("s_cmp_ge_u32", None, "s2", 256), raw("s_cbranch_scc1 L_end"))
    stamp("start")
    T = [v(vT + i) for i in range(8)]
    L = v(vLANE)
    e(valu("v_lshrrev_b32", T[0], 6, "v0"), valu("v_and_b32", L, 63, "v0"), valu("v_readfirstlane_b32", s(sWV), T[0]))
    sec("pull this kernel's code into L2: 4 lines per wave, shared out over the workgroups")
    e(raw(f"s_getpc_b64 {s(sPC, 2)}", "salu", wr=[s(sPC, 2)]))
    e.label("L_pc")
    e(salu("s_lshr_b32", s(sJ), "s2", 3), valu("v_lshlrev_b32", T[1], 7, T[0]), valu("v_lshl_add_u32", T[1], s(sJ), 2, T[1]), valu("v_add_lshl_u32", T[1], T[1], L, 7))
    e(valu("v_cmp_gt_u32", "vcc", "L_cold-L_pc", T[1]), salu("s_and_b32", s(sT0), "s2", 1), salu("s_and_b64", "exec", "vcc", 15), raw("s_cbranch_execz L_nopf"))
    e(raw(f"global_load_dword {v(vCNT)}, {T[1]}, {s(sPC, 2)}", "vload", rd=[T[1], s(sPC, 2)], wr=[v(vCNT)]))
    e.label("L_nopf")
    e(salu("s_mov_b64", "exec", -1))
    sec("ids; first k chunk = (id + 4(bb + hh)) mod 8: workgroups and dies that share x or Wq start at different chunks" if rot2 else "ids; first k chunk = G + 4bg")
    e(salu("s_bfe_u32", s(sG), "s2", (2 << 16) | 1), salu("s_lshr_b32", s(sBB), "s2", 6), salu("s_and_b32", s(sHH), s(sJ), 7),
      salu("s_lshl2_add_u32", s(sB), s(sT0), s(sBB)), salu("s_lshl3_add_u32", s(sH), s(sG), s(sHH)),
      None if rot2 else salu("s_lshl2_add_u32" if xr == (1, 2, 4) else "s_lshl1_add_u32", s(sROT), s(sT0), s(sG)), salu("s_lshl_b32", s(sW4K), s(sWV), 12))
    if rot2: e(salu("s_add_u32", s(sROT), s(sBB), s(sHH)), salu("s_lshl2_add_u32", s(sROT), s(sROT), "s2"))
    sec("LDS-DMA source offsets (bank swizzle applied on the source side); piece p = 1 KB, lane i")
    e(valu("v_lshrrev_b32", T[1], 3, L), valu("v_lshrrev_b32", T[2], 4, L), valu("v_and_b32", T[3], 7, L), valu("v_and_b32", T[4], 15, L))
    e(valu("v_lshl_add_u32", v(vKD), T[0], 4, T[2]), valu("v_lshlrev_b32", v(vOD), 1, T[2]), valu("v_xor_b32", T[6], T[4], v(vOD)), valu("v_lshlrev_b32", v(vVD), 4, T[6]))
    e(valu("v_lshl_add_u32", v(vWD), v(vKD), 13, v(vVD)), valu("v_xor_b32", T[7], 128, v(vWD)))
    e(valu("v_add_u32", v(vWD + 1), 31744, v(vWD)), valu("v_add_u32", v(vWD + 2), 2 * 31744, T[7]), valu("v_add_u32", v(vWD + 3), 3 * 31744, T[7]))
    e(salu("s_lshr_b32", s(sT2), s(sG), 1), salu("s_lshl_b32", s(sT2), s(sT2), 14), salu("s_sub_u32", s(sT3), 2 * 7168 + 4096, s(sT2)), salu("s_add_u32", s(sT2), s(sT2), 4096))
    e(valu("v_lshl_add_u32", T[5], T[0], 5, T[1]), valu("v_lshlrev_b32", T[5], 10, T[5]), valu("v_xor_b32", T[6], T[3], T[2]), valu("v_lshl_add_u32", T[6], T[6], 4, T[5]))
    e(valu("v_xor_b32", T[7], 64, T[6]), valu("v_add_u32", T[7], 7168, T[7]))
    e(valu("v_add_u32", v(vXD), s(sT2), T[6]), valu("v_add_u32", v(vXD + 1), s(sT2), T[7]), valu("v_add_u32", v(vXD + 2), s(sT3), T[6]), valu("v_add_u32", v(vXD + 3), s(sT3), T[7]))
    e(salu("s_lshl_b32", s(sT0), s(sB), 17), salu("s_lshl_b32", s(sT1), s(sH), 8), salu("s_sub_u32", s(sW_ + 2), 4 << 20, s(sT1)),
      salu("s_mov_b32", s(sW_ + 3), "0x20000"), salu("s_mov_b32", s(sX + 2), 131072 + 4096), salu("s_mov_b32", s(sX + 3), "0x20000"))
    def xw_issue(st):
        z = st % 3
        return [salu("s_add_u32", s(sT2), s(sROT), st), salu("s_and_b32", s(sT2), s(sT2), 7), salu("s_add_u32", "m0", s(sW4K), LDS_W + z * 16384), salu("s_lshl_b32", s(sT3), s(sT2), 19)] + \
               [dma(v(vWD + p), s(sW_, 4), s(sT3), p * 1024) for p in range(4)] + \
               [salu("s_add_u32", "m0", s(sW4K), LDS_X + z * 16384), salu("s_lshl_b32", s(sT2), s(sT2), 7)] + \
               [dma(v(vXD + p), s(sX, 4), s(sT2), p * 1024) for p in range(4)]
    x0 = xw_issue(0)
    e(x0[:4])
    e(raw("s_waitcnt lgkmcnt(0)"))
    e(salu("s_add_u32", s(sW_), "s10", s(sT1)), salu("s_addc_u32", s(sW_ + 1), "s11", 0))
    e(x0[4:8])
    e(salu("s_add_u32", s(sX), "s4", s(sT0)), salu("s_addc_u32", s(sX + 1), "s5", 0), salu("s_sub_u32", s(sX), s(sX), 4096), salu("s_subb_u32", s(sX + 1), s(sX + 1), 0))
    e(x0[8:])
    sec("remaining set-up (overlaps the first loads): descriptors")
    def srd(base, plo, add, size):
        e(salu("s_add_u32", s(base), s(plo), add), salu("s_addc_u32", s(base + 1), s(plo + 1), 0),
          salu("s_mov_b32", s(base + 2), size), salu("s_mov_b32", s(base + 3), "0x20000"))
    srd(sOUT, 14, s(sT0), 131072)
    e(salu("s_lshl_b32", s(sT0), s(sB), 5), salu("s_add_u32", s(sT0), s(sT0), s(sH)), salu("s_lshl_b32", s(sT0), s(sT0), 18))
    srd(sK, 6, s(sT0), 262144); srd(sV, 8, s(sT0), 262144)
    e(salu("s_lshl_b32", s(sT0), s(sG), 20), salu("s_lshl_b32", s(sT1), s(sHH), 7), salu("s_add_u32", s(sT0), s(sT0), s(sT1)), salu("s_sub_u32", s(sT2), 1 << 20, s(sT1)))
    srd(sWO, 12, s(sT0), s(sT2))
    srd(sWS, 18, 0, WS_END)
    e(salu("s_mov_b32", s(sDBG + 2), 256), salu("s_mov_b32", s(sDBG + 3), "0x20000"))
    e(valu("v_xor_b32", T[7], v(vOD), T[3]), valu("v_lshl_add_u32", v(vOD), T[7], 4, T[5]), [valu("v_add_u32", v(vOD + p), p * 7168, v(vOD)) for p in range(1, 4)])
    e(valu("v_lshl_add_u32", v(vVD), v(vKD), 8, v(vVD)), valu("v_xor_b32", v(vVD + 1), 128, v(vVD)))
    e(valu("v_xor_b32", T[6], T[4], T[2]), valu("v_lshlrev_b32", T[6], 4, T[6]), valu("v_lshl_add_u32", v(vKD), v(vKD), 8, T[6]), [valu("v_xor_b32", v(vKD + p), 64 * p, v(vKD)) for p in range(1, 4)])
    e(valu("v_lshl_add_u32", T[6], T[4], 8, T[6]), valu("v_add_u32", v(vKA), LDS_K, T[6]), [valu("v_xor_b32", v(vKA + k), 64 * k, v(vKA)) for k in range(1, 4)])
    e([valu("v_subrev_u32", v(vKB + k), 65536, v(vKA + k)) for k in range(4)])
    e(salu("s_mov_b32", s(sHD), s(sHH)), salu("s_lshl_b32", s(sT1), s(sBB), 2))
    for i in range(1, 8):
        tab = hex(sum(((1 if i == 1 else 2 + (i - 2 + (0, 2, 4, 3)[bb]) % 6) if wpre else 1 + (i - 1 + 2 * bb) % 7) << (4 * bb) for bb in range(4)))
        e(salu("s_lshr_b32", s(sT0), tab, s(sT1)), salu("s_add_u32", s(sT0), s(sT0), s(sHH)), salu("s_and_b32", s(sHD + i), s(sT0), 7))
    sec("hand-off addresses. Flags: 128-byte lines, 4 KB block (b,G); line 4c = O of head c is out, line 4c+i = part from group G^i is out")
    e(salu("s_lshl2_add_u32", s(sT0), s(sB), s(sG)), salu("s_lshl2_add_u32", s(sT1), s(sT0), s(sWV)), salu("s_lshl_b32", s(sOB), s(sT1), 16))
    e(valu("v_and_b32", T[5], 3, L), valu("v_lshlrev_b32", v(vL16), 4, L), valu("v_bfrev_b32", T[7], 1), valu("v_add_u32", v(vL16B), 4096, v(vL16)))
    e(salu("s_lshl_b32", s(sT3), s(sB), 5), salu("s_lshl2_add_u32", s(sT1), s(sB), s(sWV)), salu("s_lshl_b32", s(sT1), s(sT1), 12), salu("s_add_u32", s(sT1), s(sT1), WS_F))
    e(valu("v_mov_b32", v(vCA), s(sT3)), valu("v_add_u32", v(vCL), s(sT1), v(vL16)))
    e(salu("s_or_b32", s(sT2), s(sWV), s(sH)), salu("s_cselect_b32", s(sT3), 4096, s(sT3)), valu("v_lshl_add_u32", v(vSIG), L, 12, s(sT3)))
    e(salu("s_lshl_b32", s(sT0), s(sT0), 12), salu("s_add_u32", s(sT0), s(sT0), WS_F), valu("v_lshl_add_u32", v(vFP1), T[3], 9, s(sT0)))
    e(salu("s_lshl_b32", s(sT2), s(sHH), 9), salu("s_add_u32", s(sT2), s(sT2), s(sT0)))
    e(valu("v_max_u32", T[6], 1, T[5]), valu("v_lshl_add_u32", v(vFP2), T[6], 7, s(sT2)))
    e(valu("v_add_u32", T[6], s(sT2), v(vL16)), valu("v_lshl_or_b32", v(vFA), T[1], 28, T[6]), valu("v_lshl_or_b32", v(vFA), T[0], 28, v(vFA)))
    e(valu("v_lshlrev_b32", v(vFA2), 12, T[1]), valu("v_xor_b32", T[6], T[6], v(vFA2)), valu("v_subrev_u32", T[1], 1, T[1]), valu("v_cmp_gt_u32", "vcc", 3, T[1]))
    e(salu("s_lshl3_add_u32", s(sT1), s(sB), s(sHH)), salu("s_lshl4_add_u32", s(sT1), s(sT1), s(sWV)), salu("s_lshl_b32", s(sPB), s(sT1), 12), salu("s_add_u32", s(sPB), s(sPB), WS_P2))
    e(valu("v_cndmask_b32", v(vFA2), T[7], T[6], "vcc"), valu("v_lshl_or_b32", v(vFA2), T[0], 28, v(vFA2)), valu("v_mov_b32", v(vONE), 1))
    sec("LDS read addresses")
    e(valu("v_lshrrev_b32", T[7], 1, T[4]), valu("v_xor_b32", T[7], T[7], T[2]), valu("v_lshlrev_b32", T[7], 4, T[7]), valu("v_lshl_add_u32", T[7], T[4], 7, T[7]),
      valu("v_add_u32", v(vXA), s(sW4K), T[7]), valu("v_xor_b32", v(vXA + 1), 64, v(vXA)))
    e(valu("v_lshl_add_u32", T[7], T[0], 5, T[4]), valu("v_lshlrev_b32", T[7], 10, T[7]), valu("v_lshl_add_u32", T[7], T[2], 3, T[7]))
    e(salu("s_lshr_b32", s(sT0), s(sG), 1), salu("s_lshl_b32", s(sT0), s(sT0), 14), salu("s_and_b32", s(sT2), s(sG), 1), salu("s_lshl1_add_u32", s(sT1), s(sHH), s(sT2)), salu("s_lshl_b32", s(sT1), s(sT1), 6),
      salu("s_add_u32", s(sT0), s(sT0), s(sT1)), valu("v_add_u32", v(vOUTA), s(sT0), T[7]), salu("s_lshl_b32", s(sT2), s(sT2), 1))
    e(valu("v_bfe_u32", T[1], L, 2, 2), valu("v_and_b32", T[3], 31, L), valu("v_lshlrev_b32", T[3], 3, T[3]))
    e(valu("v_lshl_add_u32", T[7], T[2], 3, T[1]), valu("v_lshl_add_u32", T[7], T[7], 8, T[3]), valu("v_add_u32", v(vWA), LDS_W, T[7]), [valu("v_xor_b32", v(vWA + k), 32 * k, v(vWA)) for k in range(1, 8)])
    e(valu("v_lshrrev_b32", T[6], 2, L), valu("v_lshl_add_u32", T[7], T[6], 8, T[3]), valu("v_add_u32", v(vVA), LDS_K, T[7]), [valu("v_xor_b32", v(vVA + k), 32 * k, v(vVA)) for k in range(1, 8)])
    e(valu("v_bfe_u32", T[7], L, 3, 2), valu("v_xor_b32", T[7], s(sT2), T[7]), valu("v_lshl_add_u32", T[7], T[7], 2, T[5]), valu("v_lshlrev_b32", T[7], 3, T[7]), valu("v_lshl_add_u32", v(vOA), T[6], 7, T[7]))
    e([valu("v_xor_b32", v(vOA + k), 32 * k, v(vOA)) for k in range(1, 4)], [valu("v_add_u32", v(vOA + 4 + k), 65536, v(vOA + k)) for k in range(4)])
    if txs == "bb": e(salu("s_lshl_b32", s(sTX), s(sBB), 14))
    elif txs == "hh": e(salu("s_and_b32", s(sTX), s(sHH), 3), salu("s_lshl_b32", s(sTX), s(sTX), 14))
    elif txs == "bh": e(salu("s_lshl2_add_u32", s(sTX), s(sHH), s(sBB)), salu("s_and_b32", s(sTX), s(sTX), 15), salu("s_lshl_b32", s(sTX), s(sTX), 14))
    e(salu("s_mov_b32", s(sMASK), 0))
    if bo or bv: e(salu("s_and_b32", s(sIT), s(sHH), 3))
    e(salu("s_mov_b32", s(sTHR), hex(f2u(thr))), salu("s_mov_b32", s(sSPIN), hex(f2u(1.4426950408889634 / 128 ** 0.5))))
    e(salu("s_cmp_lg_u32", None, s(sH), 0), raw("s_cbranch_scc1 L_noclr")); e.skip_begin()
    e([valu("v_mov_b32", v(vZ4 + r), 0) for r in range(4)], [bstore("buffer_store_dwordx4", v(vZ4, 4), v(vCL), s(sWS, 4), 0, k * 1024, "sc1") for k in range(4)])
    e.skip_end("L_noclr")
    e(xw_issue(1))

    cntld = bload("buffer_load_dword", v(vCNT), v(vCA), s(sDBG, 4), 0, 0, "sc1")
    def kv_issue(n):
        hd = [salu("s_add_u32", "m0", s(sW4K), RING[n & 7] * 16384), salu("s_xor_b32", s(sKOFF), s(sTX), (n & 15) * 16384)]
        return hd + [dma(v(vKD + p if n < 16 else vVD + (p & 1)), s(sK if n < 16 else sV, 4), s(sKOFF), p * 1024, "nt") for p in range(4)]
    def wo_issue(i):
        return [salu("s_add_u32", "m0", s(sW4K), i * 16384), salu("s_lshl_b32", s(sT3), s(sHD + i), 17)] + [dma(v(vOD + p), s(sWO, 4), s(sT3), p * 1024) for p in range(4)]
    def sync(n): return [raw(f"s_waitcnt vmcnt({n}) lgkmcnt(0)"), raw("s_barrier")]
    def place(G, items, pos, lo=0, hi=10 ** 9, shift=0):
        assert len(items) == len(pos) and all(a < b for a, b in zip(pos, pos[1:])), (len(items), pos)
        for x, g in zip(items, pos):
            if lo <= g < hi:
                (G.post if not isinstance(x, list) and x.kind in ("dma", "vload", "vstore") else G.sync)[g + shift].append(x)
    def lin(n, g0, g1): return [g0 + (k * (g1 - g0 + 1)) // n for k in range(n)]

    aXF = lambda st, ks, qb: a_(16 * (st & 1) + 8 * ks + 4 * qb, 4)
    aWF = lambda st, n: 32 + 64 * (st & 1) + 4 * n
    vQA = lambda db, qb: 64 + 8 * db + 4 * qb
    def q_order(st):
        return [(ks, db) for db in range(8) for ks in range(2)] if st == 7 else [(ks, db) for ks in range(2) for db in range(8)]
    def q_reads(st):
        z = st % 3
        o = []; seen = set()
        for n, (ks, db) in enumerate(q_order(st)):
            if ks not in seen:
                seen.add(ks); o += [dsr("ds_read_b128", aXF(st, ks, qb), v(vXA + ks), LDS_X + z * 16384 + qb * 2048) for qb in range(2)]
            for u in range(2):
                o.append(dsr("ds_read_b64_tr_b16", a_(aWF(st, n) + 2 * u, 2), v(vWA + db), z * 16384 + ks * 8192 + u * 1024))
        return o
    def q_mfmas(st):
        return [mfma16(v(vQA(db, qb), 4), a_(aWF(st, n), 4), aXF(st, ks, qb), 0 if (st == 0 and ks == 0) else v(vQA(db, qb), 4)) for n, (ks, db) in enumerate(q_order(st)) for qb in range(2)]
    vQF = lambda ks, qb: vQ + 8 * ks + 4 * qb
    def q_fin(db):
        o = []
        for qb in range(2):
            b = vQA(db, qb)
            o += [valu("v_mul_f32", v(b + r), s(sSPIN), v(b + r)) for r in range(4)]
            o += [valu("v_cvt_pk_bf16_f32", v(vQF(db >> 1, qb) + 2 * (db & 1) + t), v(b + 2 * t), v(b + 2 * t + 1)) for t in range(2)]
        return o
    def q_swap(ks):
        return [valu(op, v(vQF(ks, qb) + t), v(vQF(ks, qb) + 2 + t)) for op in ("v_permlane32_swap_b32", "v_permlane16_swap_b32") for qb in range(2) for t in range(2)]
    aKF = lambda n: a_(aFR + 4 * n, 4)
    vSB = lambda par, kb, qb: vS[par] + 8 * kb + 4 * qb
    korder = [(kb, ks) for kb in range(4) for ks in range(4)]
    q0order = [(kb, ks) for h in range(2) for ks in range(4) for kb in (2 * h, 2 * h + 1)]
    def k_reads(n, order=korder):
        u = RING[n & 7]
        return [dsr("ds_read_b128", aKF(4 * kb + ks), v((vKA if u >= 6 else vKB) + ks), (u - 2) % 4 * 16384 + kb * 4096) for kb, ks in order]
    def qk_mfmas(par, first, order=korder):
        return [mfma16(v(vSB(par, kb, qb), 4), aKF(4 * kb + ks), v(vQF(ks, qb), 4), (0 if first else v(vNEGM + 4 * qb, 4)) if ks == 0 else v(vSB(par, kb, qb), 4))
                for kb, ks in order for qb in range(2)]
    def max_ops(par):
        o = []
        r = lambda qb, k: v(vSB(par, k >> 2, qb) + (k & 3))
        for qb in range(2): o.append((valu("v_max3_f32", T[qb], r(qb, 0), r(qb, 1), r(qb, 2)), 0))
        for k in range(3, 15, 2):
            for qb in range(2): o.append((valu("v_max3_f32", T[qb], T[qb], r(qb, k), r(qb, k + 1)), (k + 1) >> 2))
        return o
    last = lambda par, qb: v(vSB(par, 3, qb) + 3)
    def xlanes(op):
        o = []
        for sw in ("v_permlane16_swap_b32", "v_permlane32_swap_b32"):
            o += [valu("v_mov_b32", T[2], T[0]), valu("v_mov_b32", T[3], T[1]), valu(sw, T[0], T[2]), valu(sw, T[1], T[3]), valu(op, T[0], T[0], T[2]), valu(op, T[1], T[1], T[3])]
        return o
    aVF = lambda j, db: aFR + 4 * (8 * j + db)
    at_ = [t for t in range(16) if t not in vt]
    pbase = lambda t: vPV + 16 * vt.index(t) if t in vt else 16 * at_.index(t)
    PF = lambda t, j, qb: (v if t in vt else a_)(pbase(t) + 8 * j + 4 * qb, 4)
    def soft(t):
        par = t & 1
        regs_ = [(kb, qb, r) for kb in range(4) for qb in range(2) for r in range(4)]
        ex = [(valu("v_exp_f32", v(vSB(par, kb, qb) + r), v(vSB(par, kb, qb) + r)), kb) for kb, qb, r in regs_]
        o = ex[:3]; pend = []
        for k in range(0, 32, 2):
            kb, qb, r = regs_[k]
            d = 8 * (kb >> 1) + 4 * qb + 2 * (kb & 1) + (r >> 1)
            tmp = T[6 + ((k >> 1) & 1)]
            o.append((valu("v_cvt_pk_bf16_f32", v(pbase(t) + d) if t in vt else tmp, v(vSB(par, kb, qb) + r), v(vSB(par, kb, qb) + r + 1)), kb))
            o += ex[k + 3:k + 4] + pend + ex[k + 4:k + 5]
            pend = [] if t in vt else [(raw(f"v_accvgpr_write_b32 a{pbase(t) + d}, {tmp}", "valu", rd=[tmp], wr=[f"a{pbase(t) + d}"]), 3)]
        return o + pend
    def v_reads(n, order):
        un = RING[n & 7]
        return [dsr("ds_read_b64_tr_b16", a_(aVF(j, db) + 2 * u, 2), v((vVA if un >= 6 else vVB) + db), (un - 2) % 4 * 16384 + j * 8192 + u * 4096) for j, db in order for u in range(2)]
    vOB = lambda db, qb: vO + 8 * db + 4 * qb
    def pv_mfmas(t, order):
        return [mfma16(v(vOB(db, qb), 4), a_(aVF(j, db), 4), PF(t, j, qb), 0 if t == 0 and j == 0 else v(vOB(db, qb), 4)) for j, db, qb in order]
    def l_mfmas(t):
        return [mfma16(v(vL + 4 * qb, 4), v(vKD, 4), PF(t, j, qb), 0 if t == 0 and j == 0 else v(vL + 4 * qb, 4)) for j in range(2) for qb in range(2)]
    jd = [(j, db) for j in range(2) for db in range(8)]
    jdq = [(j, db, qb) for j, db in jd for qb in range(2)]
    rare, resc = [], []
    def branch(t):
        e(raw(f"s_cbranch_vccnz L_rare{t}")); rare.append((t, e.snapshot())); e.label(f"L_back{t}")
    def rescale(t):
        e(salu("s_bitcmp1_b32", None, s(sMASK), t), raw(f"s_cbranch_scc1 L_resc{t}")); resc.append((t, e.snapshot())); e.label(f"L_rback{t}")
    ms = [m for st in range(8) for m in q_mfmas(st)]
    g0 = {}
    for n in range(31):
        g0[n] = len(ms)
        ms += qk_mfmas(n & 1, n == 0, q0order if n == 0 else korder) if n < 16 else l_mfmas(n - 16) + pv_mfmas(n - 16, jdq)
    g0[31] = len(ms)
    G = newgaps(ms)
    sec("Q projection: 8 steps; each barrier publishes the next step's tiles and frees the slot read last")
    iss = {st: xw_issue(st + 2) if st < 6 else [] for st in range(8)}
    iss[1] = [bstore("buffer_store_dword", v(vONE), v(vSIG), s(sDBG, 4), 0, 0, "sc1")] + iss[1]
    todict = lambda p: dict(p) if isinstance(p, dict) else {st: 4 * list(p).count(st) for st in p}
    def lists(pp):
        o = {}; k = 0
        for st in sorted(pp):
            o[st] = (k, [])
            for i in range(pp[st]):
                c, p = divmod(k, 4)
                assert c < 4 or (c < 6 and st >= 6)
                it = kv_issue(c)
                o[st][1].extend((it[:2] if p == 0 or i == 0 else []) + [it[2 + p]]); k += 1
        return o, k
    counts = lambda pp: {st: (8 if st < 7 else 0) + (st == 2) + sum(k for p, k in pp.items() if min(st - 2, 5) <= p < st) for st in range(1, 8)}
    pp, pp2 = todict(plan), todict(plan2 or plan)
    (la, npre), (lb, npre2) = lists(pp), lists(pp2)
    assert npre == npre2
    def cond(st, grp, items):
        def f():
            e(salu("s_bitcmp1_b32", None, "s2", sel), raw(f"s_cbranch_scc{1 - grp} L_pl{st}_{grp}")); e.skip_begin()
            e(items); e.skip_end(f"L_pl{st}_{grp}")
        return [hook(f)]
    for st in range(8):
        if st in la and st in lb and la[st][0] == lb[st][0] and pp[st] == pp2[st]: iss[st] = iss[st] + la[st][1]
        else:
            if st in la: iss[st] = iss[st] + [cond(st, 0, la[st][1])]
            if st in lb: iss[st] = iss[st] + [cond(st, 1, lb[st][1])]
    cnt, cnt2 = counts(pp), counts(pp2)
    cnt[7] = min(cnt[7], gate7); cnt2[7] = min(cnt2[7], gate7)
    def qsync(st):
        if cnt[st] == cnt2[st]: return sync(cnt[st])
        def f():
            hi = int(cnt2[st] > cnt[st])
            e(salu("s_bitcmp1_b32", None, "s2", sel), raw(f"s_cbranch_scc{hi} L_qw{st}")); e.skip_begin()
            e(raw(f"s_waitcnt vmcnt({min(cnt[st], cnt2[st])})")); e.skip_end(f"L_qw{st}")
        return [hook(f)] + sync(max(cnt[st], cnt2[st]))
    r0 = q_reads(0)
    e(salu("s_cmp_eq_u32", None, s(sH), 0), raw("s_cbranch_scc1 L_clw"), raw("s_waitcnt vmcnt(8)"))
    e.label("L_clw")
    e(sync(12)); stamp("q0")
    e(r0[:12], need(aXF(0, 0, 1), a_(aWF(0, 0), 8)))
    G.spread(r0[12:], 0, RL)
    place(G, iss[0], lin(len(iss[0]), 0, SY - 1))
    for st in range(1, 8):
        g = 32 * (st - 1) + SY
        G.sync[g] = qsync(st) + [hstamp(f"q{st}")]
        G.spread(q_reads(st), g, 32 * st + RL)
        if iss[st] and qeven:
            mem = [k for k, x in enumerate(iss[st]) if not isinstance(x, list) and x.kind in ("dma", "vstore")]
            mp = lin(len(mem), g + 3, g + 31)
            prev = -1
            for k, gg in zip(mem, mp):
                sc = iss[st][prev + 1:k]
                if sc: G.sync[gg - 1].append(sc)
                G.post[gg].append(iss[st][k]); prev = k
        elif iss[st]: place(G, iss[st], lin(len(iss[st]), g + 1, g + 30))
    if np_ is None: np_ = [4] * (32 - npre // 4)
    np_ = list(np_) + [0] * 31
    nxt = npre
    worder = wo_ if wo_ else (1, 2, 0, 3, 4, 5, 6, 7) if n14 <= 1 else (6, 7, 0, 1, 2, 5, 3, 4)
    nwo = 0
    for n in range(31):
        g = g0[n] - (10 if n < 16 else 6)
        assert nxt >= 4 * (n + 1)
        young = min(nxt - 4 * (n + 1) + 4 * nwo, ((gate[min(n, len(gate) - 1)] if isinstance(gate, tuple) else gate) if n < 16 else gatev) if n > 0 else gate0) + (n == 25)
        m = n
        while m + 1 in nobar: m += 1
        if n not in nobar:
            lastbar = n
            assert young <= nxt - 4 * (m + 1) + 4 * nwo + (n == 25), (n, young, nxt)
        G.sync[g] = [raw(f"s_waitcnt vmcnt({young})")] + ([] if n in nobar else [raw("s_barrier")]) + ([hstamp("k0")] if n == 0 else []) + ([hstamp("lend")] if n == 30 else []) + [hstamp(f"c{n}")]
        if bo and bo[0] <= n <= bo[1]:
            def w2(n=n, a=young, b=min(nxt - 4 * (n + 1), young + bo[2])):
                e(salu("s_cmp_eq_u32", None, s(sIT), 1), raw(f"s_cbranch_scc1 L_bo{n}")); e.skip_begin()
                e(raw(f"s_waitcnt vmcnt({a})")); e.skip_end(f"L_bo{n}")
                e(raw(f"s_waitcnt vmcnt({b})"))
            G.sync[g][0] = hook(w2)
        G.spread(k_reads(n, q0order if n == 0 else korder) if n < 16 else v_reads(n, jd), g, g + 31)
        if n == pf2:
            G.val[g + 1] += [valu("v_lshl_add_u32", T[6], s(sJ), 2, s(sWV)) if False else valu("v_mov_b32", T[6], s(sJ)), valu("v_lshlrev_b32", T[6], 2, T[6]), valu("v_add_u32", T[6], s(sWV), T[6]), valu("v_lshlrev_b32", T[6], 7, T[6]),
                             valu("v_min_u32", T[6], "L_cold-L_tail", T[6]), valu("v_add_u32", T[6], "L_tail-L_pc", T[6])]
            G.post[g + 2].append(raw(f"global_load_dword {T[7]}, {T[6]}, {s(sPC, 2)}", "vload", rd=[T[6], s(sPC, 2)], wr=[T[7]]))
        if n == 24:
            assert nxt >= 104
            G.post[g].append(cntld)
        k = min(np_[n], 128 - nxt)
        late = kl if n < 16 else vl
        pos = [3 + i for i in range(min(k, ne))] + (lin(k - ne, late[0], late[1]) if k > ne else [])
        pgn = (pg if n < pg1 else None) if n >= pg0 else pgk
        if pgn is not None and k: pos = lin(k, 3, 3 + (31 if n < 15 else 35))
        wx = wpre.index(n) if wpre and n in wpre else None
        if wx is not None:
            assert pgn is not None
            pos = lin(k + 1, 3, 38)
            it = wo_issue(wx >> 2)
            place(G, it[:2], [g + pos[k] - 2, g + pos[k] - 1])
            G.sync[g + pos[k]].append(raw(f"s_waitcnt vmcnt({pgn})"))
            place(G, [it[2 + (wx & 3)]], [g + pos[k]])
        prev = 0
        for i in range(k):
            c, p = divmod(nxt, 4)
            assert c - lastbar <= 6 and (c & 7 != 7 or lastbar >= 1), (c, n, lastbar)
            it = kv_issue(c)
            hdr = p == 0 or (i == 0 and wpre and n - 1 in wpre)
            pos[i] = max(pos[i], prev + (3 if hdr else 1))
            if hdr: place(G, it[:2], [g + pos[i] - 2, g + pos[i] - 1])
            if pgn is not None and bv and bv[0] <= n <= bv[1]:
                def w3(lab=nxt, a=pgn):
                    e(salu("s_cmp_eq_u32", None, s(sIT), 1), raw(f"s_cbranch_scc1 L_bv{lab}")); e.skip_begin()
                    e(raw(f"s_waitcnt vmcnt({a})")); e.skip_end(f"L_bv{lab}")
                    e(raw(f"s_waitcnt vmcnt({a + bv[2]})"))
                G.sync[g + pos[i]].append(hook(w3))
            elif pgn is not None: G.sync[g + pos[i]].append(raw(f"s_waitcnt vmcnt({pgn})"))
            place(G, [it[2 + p]], [g + pos[i]])
            prev = pos[i]; nxt += 1
        assert prev < (32 if n < 15 else 36)
        if n >= wat and nwo < n14:
            assert k == 0 and nxt == 128 and worder[nwo] not in [RING[c & 7] for c in range(n - 1, 32)]
            place(G, wo_issue(worder[nwo]), lin(6, g + wpos[0], g + wpos[1])); nwo += 1
    assert nxt == 128 and np_[30] == 0 and nwo == n14
    G.waits(4, 4, g0=0, prev=())
    fin = []
    for db in range(8):
        dl = 256 + 4 * (db >> 1) - 2
        fin += [(x, 224 + 4 * db + 6, dl) for x in q_fin(db)]
        if db & 1: fin += [(x, None, dl) for x in q_swap(db >> 1)]
    G.asap(fin + [(x, 276, None) for x, kb in max_ops(0) if kb < 2], 228, 287, cap=5)
    def first():
        sec("first tile: true row max becomes the reference")
        e([x for x, kb in max_ops(0) if kb >= 2], [valu("v_max_f32", T[qb], T[qb], last(0, qb)) for qb in range(2)], xlanes("v_max_f32"))
        e([valu("v_sub_f32", v(vNEGM + i), 0, T[i >> 2]) for i in range(8)])
        stamp("loop")
        sec("K pass: QK(t+1) under the max check, exp and pack of tile t")
    G.end[287].append(hook(first))
    carry = []
    CH = 5
    for t in range(16):
        a, b = g0[t + 1], g0[t + 2] - 1
        par = t & 1
        sf = soft(t)
        if t == 0:
            add = [[(valu("v_add_f32", v(vSB(0, kb, qb) + r), v(vSB(0, kb, qb) + r), v(vNEGM + 4 * qb)), kb) for qb in range(2) for r in range(4)] for kb in range(4)]
            o = add[0] + add[1][:4]; rest = add[1][4:] + add[2] + add[3]
            for x in sf: o += [x] + rest[:1]; rest = rest[1:]
            sf = o; lo = a
        else:
            tail = [x for x, kb in max_ops(par) if kb == 3] + [valu("v_max3_f32", T[2], T[0], T[1], last(par, 0)), valu("v_max_f32", T[2], T[2], last(par, 1)), valu("v_cmp_lt_f32", "vcc", s(sTHR), T[2])]
            G.fill([(x, None, None) for x in carry] + [(x, a + 2, None) for x in tail], a, a + CH, cap=capk)
            G.end[a + CH].append(hook(lambda t=t: branch(t)))
            lo = a + CH + 1
        ncar = 9 if t < 15 else 0
        carry = [x for x, kb in sf[len(sf) - ncar:]]
        assert all(kb == 3 for x, kb in sf[len(sf) - ncar:])
        items = [(x, None, None) for x, kb in sf[:len(sf) - ncar]]
        if t < 15:
            mx = [(x, a + 8 * kb + 11) for x, kb in max_ops(1 - par) if kb < 3]
            for x, g in mx:
                while G.load(g) >= 3 and g < b: g += 1
                G.val[g].append(x); mx_last = g
        if t == 14 and row0:
            items = [(x, None, None) for x in [valu("v_and_b32", v(vKD), 15, L), valu("v_min_u32", v(vKD), 1, v(vKD)), valu("v_subrev_u32", v(vKD), 1, v(vKD)), valu("v_and_b32", v(vKD), "0x3f803f80", v(vKD))] +
                     [valu("v_mov_b32", v(vKD + r), v(vKD)) for r in range(1, 4)]] + items
        elif t == 14: items = [(valu("v_mov_b32", v(vKD + r), 0 if nol else "0x3f803f80"), None, None) for r in range(4)] + items
        if t == 15 and s15:
            a0, b0 = max(lo, g0[s15[0]]), g0[s15[1] + 1] - 2
            for (x, _, _), gg in zip(items, lin(len(items), a0, b0)): G.val[gg].append(x)
        else: G.fill(items, lo, b, cap=capk)
    for k in range(8): G.val[g0[17] + 2 + k].append(valu("v_subrev_u32", v(vVB + k), 65536, v(vVA + k)))
    G.end[g0[16] - 1].append(hook(lambda: sec("V pass: l += 1^T P^T, O^T += V^T P^T")))
    for t in range(1, 15): G.end[g0[16 + t] - 1].append(hook(lambda t=t: rescale(t)))
    if verbose:
        for n in (1, 2, 7, 15, 16, 17): print(n, " ".join(str(G.load(g)) for g in range(g0[n], g0[n + 1])))
    G.emit(e, 0, 227)
    sec("Q * log2(e)/sqrt(Dh) -> bf16 B fragments; scores of the first tile")
    if skipl or halfv:
        e.flt = lambda i: not ((skipl and i.kind == "mfma" and f"v[{vKD}:" in i.text) or (halfv and i.kind == "dsr" and "tr_b16" in i.text and e.tag.startswith("V pass") and int(i.wr[0][1:]) & 4))
    G.emit(e, 228)
    e.flt = None
    sec("last tile; normalise, pack and hand O out")
    if pf2: e.label("L_tail")
    rescale(15)
    e(l_mfmas(15))
    e(salu("s_lshl_b32", s(sT0), s(sHH), 13), salu("s_add_u32", s(sT0), s(sT0), s(sOB)))
    if row0: e(valu("v_mov_b32", T[0], v(vL)), valu("v_mov_b32", T[1], v(vL + 4)), xlanes("v_add_f32"))
    e(sync(4 * n14))
    stamp("v15")
    rds = v_reads(31, [(j, db) for db in range(8) for j in range(2)])
    vOF = lambda F, qb: vS[1] + 8 * F + 4 * qb
    def o_fin(db):
        o = []
        for qb in range(2):
            b = vOB(db, qb)
            o += [valu("v_mul_f32", v(b + r), T[4 + qb], v(b + r)) for r in range(4)]
            o += [valu("v_cvt_pk_bf16_f32", v(vOF(db >> 1, qb) + 2 * (db & 1) + t), v(b + 2 * t), v(b + 2 * t + 1)) for t in range(2)]
        return o
    o_st = lambda f: bstore("buffer_store_dwordx4", v(vS[1] + 4 * f, 4), v(vL16 if f < 4 else vL16B), s(sWS, 4), s(sT0), (f & 3) * 1024, "sc1")
    G = newgaps(pv_mfmas(15, [(j, db, qb) for db in range(8) for j in range(2) for qb in range(2)]))
    e(rds[:12], valu("v_rcp_f32", T[4], T[0] if row0 else v(vL)), valu("v_rcp_f32", T[5], T[1] if row0 else v(vL + 4)), need(a_(aVF(0, 0), 4), a_(aVF(1, 0), 4)))
    G.spread(rds[12:], 0, 9)
    G.waits(4, 2, g0=2, g1=14, prev=())
    for db in range(6):
        for k, x in enumerate(o_fin(db)): G.val[8 + 4 * db + k // 3].append(x)
    for F in range(2):
        for qb in range(2): G.post[16 + 8 * F + qb].append(o_st(2 * F + qb))
    G.emit(e)
    e(o_st(4), o_st(5), o_fin(6), o_fin(7)[:6], o_st(6), o_fin(7)[6:], o_st(7))
    stamp("ost")
    sec("first hand-off; the Wo slice streams into LDS meanwhile")
    assert RING[7] not in worder[n14:n14 + nack]
    e([wo_issue(i) for i in worder[n14:n14 + nack]])
    e(salu("s_mov_b32", s(sSPIN), 0), [valu("v_mov_b32", v(vNEGM + r), 1) for r in range(4)])
    e(raw(f"s_waitcnt vmcnt({4 * nack})"))
    e.label("L_cnt")
    e(valu("v_cmp_ne_u32", "vcc", 1, v(vCNT)), raw("s_cbranch_vccnz L_cnt2"))
    e.label("L_cntok")
    fst = lambda a: bstore("buffer_store_dwordx4", v(vNEGM, 4), a, s(sWS, 4), 0, 0, "sc1")
    e(raw("s_barrier"))
    stamp("f1")
    conv = [[salu("s_lshl_b32", s(sHD + i), s(sHD + i), 13), salu("s_add_u32", s(sHD + i), s(sHD + i), s(sOB))] for i in range(1, 8)]
    pld = lambda addr: bload("buffer_load_dword", T[0], addr, s(sWS, 4), 0, 0, "sc1")
    def poll(lbl, addr, pre=None):
        e(salu("s_cmp_lg_u32", None, s(sWV), 1), raw(f"s_cbranch_scc1 {lbl}_x"))
        if pre is not None: e(raw(f"s_waitcnt vmcnt({pre})"), valu("v_cmp_ne_u32", "vcc", 1, T[0]), raw(f"s_cbranch_vccz {lbl}_x"))
        e.label(lbl)
        e(pld(addr))
        e(salu("s_add_u32", s(sSPIN), s(sSPIN), 1), salu("s_cmp_ge_u32", None, s(sSPIN), 1 << 20), raw(f"s_cbranch_scc1 {lbl}_x"))
        e(raw("s_waitcnt vmcnt(0)"), valu("v_cmp_ne_u32", "vcc", 1, T[0]), raw(f"s_cbranch_vccnz {lbl}"))
        e.label(lbl + "_x")
    e(fst(v(vFA)), [wo_issue(i) for i in worder[n14 + nack:]], conv)
    poll("L_poll1", v(vFP1))
    e(raw("s_waitcnt vmcnt(0)"), raw("s_barrier"))
    stamp("p1")
    sec("output projection over the group's 8 heads; the three parts that are handed on first, the own part last")
    aOF = lambda i, f: a_(32 * i + 4 * f, 4)
    vAC = lambda nb, qb: 16 * qb + 4 * nb
    both = (0, 1)
    seq = [(0, F, nb, both) for F in range(4) for nb in range(4)]
    seq += [(i, F, nb, both if nb > 1 else (1,)) for i in range(1, 8) for F in range(4) for nb in (3, 2, 1, 0)]
    seq += [(i, F, nb, (0,)) for i in range(1, 8) for F in range(4) for nb in range(2)]
    mseq = [(n, i, F, nb, qb) for n, (i, F, nb, qbs) in enumerate(seq) for qb in qbs]
    fgap = {}
    for g, x in enumerate(mseq): fgap.setdefault(x[0], g)
    vWF = lambda n: 96 + 4 * (n % 16)
    def wo_read(n, u):
        i, F, nb, _ = seq[n]
        return dsr("ds_read_b64_tr_b16", v(vWF(n) + 2 * u, 2), v(vOA + nb + 4 * (i >> 2)), (i & 3) * 16384 + F * 4096 + u * 2048)
    loads = [bload("buffer_load_dwordx4", aOF(i, f), v(vL16 if f < 4 else vL16B), s(sWS, 4), s(sHD + i), (f & 3) * 1024, "sc1") for i in range(1, 8) for f in range(8)]
    G = newgaps([mfma16(v(vAC(nb, qb), 4), v(vWF(n), 4), v(vOF(F, qb), 4) if i == 0 else aOF(i, 2 * F + qb), 0 if (i == 0 and F == 0) else v(vAC(nb, qb), 4))
                 for n, i, F, nb, qb in mseq])
    LA = 5
    gp = 0
    for n in range(LA, len(seq)):
        for u in range(2):
            gp = max(gp, fgap[n] - (10 if fgap[n] < 204 else 7) + (u if len(seq[n][3]) == 2 else 0))
            while len(G.post[gp]) >= 2: gp += 1
            G.post[gp].append(wo_read(n, u))
    G.waits(4, 4, g1=195); G.waits(2, 4, g0=196)
    e(loads[:N0])
    for n in range(LA): e(wo_read(n, 0), wo_read(n, 1))
    e.wait_lgkm(0)
    first_use = {}
    for g, (n, i, F, nb, qb) in enumerate(mseq):
        if i > 0: first_use.setdefault(8 * (i - 1) + 2 * F, g)
    NL = 56
    if emud:
        NL = 24
        first_use = {k: 64 + 7 * k if k < 16 else 176 + (k - 16) for k in range(0, 24, 2)}
        at = {k: 40 + 5 * (k - 8) for k in range(N0, NL)}
    else: at = {k: max(0, 32 + 3 * (k - OLEAD) + 1) for k in range(N0, 56)}
    for k in range(N0, NL): G.post[at[k]].append(loads[k])
    for k in range(0, NL, 2):
        g = first_use[k] - 1
        issued = N0 + sum(1 for kk in range(N0, NL) if at[kk] < g)
        assert issued >= k + 2
        G.sync[g].append(raw(f"s_waitcnt vmcnt({issued - (k + 2)})"))
    for i in range(4):
        for k, x in enumerate([salu("s_xor_b32", s(sT0 + i), s(sG), i), salu("s_lshl_b32", s(sT0 + i), s(sT0 + i), 14), salu("s_add_u32", s(sT0 + i), s(sT0 + i), s(sPB))]): G.sync[1 + 6 * i + 2 * k].append(x)
    pk = lambda i, u: [valu("v_cvt_pk_bf16_f32", v(32 + 4 * i + 2 * u + t), v(8 * i + 4 * u + 2 * t), v(8 * i + 4 * u + 2 * t + 1)) for t in range(2)]
    for (i, u), g in zip(((1, 1), (3, 1), (1, 0), (3, 0), (2, 1), (2, 0)), range(198, 204)): G.val[g] += pk(i, u)
    if emud:
        for i in range(7): G.post[192 + 8 * i].append(bstore("buffer_store_dwordx4", v(vS[1] + 4 * i, 4), v(vL16), s(sWS, 4), s(sT0 + 1 + i % 3), (i // 3 + 1 + i % 3) % 4 * 1024, "sc1"))
        f2g = 255
    for i, g in () if emud else ((1, 201), (3, 202), (2, 204)): G.post[g].append(bstore("buffer_store_dwordx4", v(32 + 4 * i, 4), v(vL16), s(sWS, 4), s(sT0 + i), i * 1024, "sc1"))
    G.end[204].append(hstamp("gemm"))
    G.sync[f2g] += [raw("s_waitcnt vmcnt(0)"), raw("s_barrier"), fst(v(vFA2)), hstamp("f2")]
    G.emit(e)
    sec("second hand-off: sum the four groups' parts and store")
    e(salu("s_mov_b32", s(sT1), "0xffff0000"))
    poll("L_poll2", v(vFP2))
    e(raw("s_barrier"))
    stamp("p2")
    e([bload("buffer_load_dwordx4", v(160 + 4 * i, 4), v(vL16), s(sWS, 4), s(sT0), (i + 1) * 1024, "sc1") for i in range(3)])
    if emud:
        e([bload("buffer_load_dwordx4", v(128 + 4 * i, 4), v(vL16), s(sWS, 4), s(sT2 if i < 2 else sT3), (i & 1) * 1024, "sc1") for i in range(4)])
        for i in range(4):
            e(raw(f"s_waitcnt vmcnt({6 - i})"))
            for d in range(4): e(valu("v_lshlrev_b32", v(176 + 2 * d), 16, v(160 + d)), valu("v_and_b32", v(177 + 2 * d), s(sT1), v(160 + d)))
            for r in range(8): e(valu("v_add_f32", v(r), v(r), v(176 + r)))
    for i in range(3):
        e(raw(f"s_waitcnt vmcnt({2 - i})"))
        for d in range(4): e(valu("v_lshlrev_b32", v(176 + 2 * d), 16, v(160 + 4 * i + d)), valu("v_and_b32", v(177 + 2 * d), s(sT1), v(160 + 4 * i + d)))
        for r in range(8): e(valu("v_add_f32", v(r), v(r), v(176 + r)))
    for t in range(4): e(valu("v_cvt_pk_bf16_f32", v(8 + t), v(2 * t), v(2 * t + 1)))
    for u in range(2): e(bstore("buffer_store_dwordx2", v(8 + 2 * u, 2), v(vOUTA), s(sOUT, 4), 0, 32 * u))
    if stamps:
        e(raw("s_waitcnt vmcnt(0)"))
        stamp("end")
        e(raw("s_waitcnt lgkmcnt(0)"))
        e(salu("s_cmp_lg_u32", None, s(sWV), 0), raw("s_cbranch_scc1 L_end"))
        e(salu("s_lshl_b32", s(sT0), "s2", 8), salu("s_add_u32", "s18", s(sWS), s(sT0)), salu("s_addc_u32", "s19", s(sWS + 1), 0),
          salu("s_add_u32", "s18", "s18", STAMP_OFF), salu("s_addc_u32", "s19", "s19", 0), salu("s_mov_b64", "exec", 1), valu("v_mov_b32", "v4", 0))
        for i in range(len(names)):
            e(valu("v_mov_b32", "v2", s(sSTAMP + 2 * i)), valu("v_mov_b32", "v3", s(sSTAMP + 2 * i + 1)))
            e(raw(f"global_store_dwordx2 v4, v[2:3], s[18:19] offset:{8*i}", "vstore", rd=["v[2:3]"]))
    e(raw("s_endpgm"))
    e.label("L_cold")
    acr = lambda d, a: raw(f"v_accvgpr_read_b32 {d}, a{a}", "valu", rd=[f"a{a}"], wr=[d])
    acw = lambda a, x: raw(f"v_accvgpr_write_b32 a{a}, {x}", "valu", rd=[x], wr=[f"a{a}"])
    for t, st in rare:
        sec(f"tile {t}: a row's max rose by more than the threshold: move the reference to the true running max, keep the factor")
        par = t & 1
        e.restore(st)
        e.label(f"L_rare{t}")
        e([valu("v_max3_f32", T[qb], T[qb], last(par, qb), 0) for qb in range(2)], xlanes("v_max_f32"))
        e([valu("v_exp_f32", T[4 + qb], "-" + T[qb]) for qb in range(2)])
        e([valu("v_sub_f32", v(vS[par] + i), v(vS[par] + i), T[(i >> 2) & 1]) for i in range(32)])
        if t < 15:
            e([valu("v_sub_f32", v(vNEGM + i), v(vNEGM + i), T[i >> 2]) for i in range(8)])
            e([valu("v_sub_f32", v(vS[1 - par] + i), v(vS[1 - par] + i), T[i >> 2]) for i in range(8)])
        e([acw(aF + 2 * t + qb, T[4 + qb]) for qb in range(2)], salu("s_bitset1_b32", s(sMASK), t))
        e(raw("s_nop 1", states=2), raw(f"s_branch L_back{t}"))
    for t, st in resc:
        sec(f"tile {t} was taken at a new reference: bring O and l to it")
        e.restore(st)
        e.label(f"L_resc{t}")
        e([acr(T[4 + qb], aF + 2 * t + qb) for qb in range(2)])
        e([valu("v_mul_f32", v(vL + i), v(vL + i), T[4 + (i >> 2)]) for i in range(8)])
        e([valu("v_mul_f32", v(vO + i), v(vO + i), T[4 + ((i >> 2) & 1)]) for i in range(64)])
        e(raw("s_nop 1", states=2), raw(f"s_branch L_rback{t}"))
    sec("the flag reset of this batch has not been reported yet: look again")
    e.label("L_cnt2")
    e(cntld, salu("s_add_u32", s(sSPIN), s(sSPIN), 1), salu("s_cmp_lt_u32", None, s(sSPIN), 1 << 20), raw("s_waitcnt vmcnt(0)"), raw("s_cbranch_scc1 L_cnt"), raw("s_branch L_cntok"))
    e.label("L_end")
    e(raw("s_endpgm"))
    for l in ['.section .rodata,"a"', ".p2align 6", f".amdhsa_kernel {KN}", "  .amdhsa_next_free_vgpr 512", "  .amdhsa_next_free_sgpr 102", "  .amdhsa_accum_offset 256",
              "  .amdhsa_group_segment_fixed_size 0", "  .amdhsa_kernarg_size 64", "  .amdhsa_user_sgpr_count 2", "  .amdhsa_user_sgpr_kernarg_segment_ptr 1",
              "  .amdhsa_system_sgpr_workgroup_id_x 1", ".end_amdhsa_kernel"]:
        e.text(l)
    open(path, "w").write("\n".join(e.lines) + "\n")
    return e, names

if __name__ == "__main__":
    e, n = gen("k_v8.s", verbose=True)
    print("nops", e.nops); print("\n".join(e.log))
```

```python
import sys
sys.path.insert(0,'work')
from gen8 import gen
from final8 import BEST8 as B, gv, give
gen("z_r2.s", **{**B, "np_": give((11, 13, 15, 18, 20, 21, 22, 24, 25, 27))})
S = dict(s15=(16, 29))
MID = (0, 6, 7, 9, 10, 15)
V = {"a": {}, "s": S, "s16": dict(pg0=16, **S), "sm": dict(np_=give((7, 10, 18, 20, 21, 22, 24, 25, 27, 28)), vt=MID, **S), "sm16": dict(np_=give((7, 10, 17, 19, 21, 22, 24, 25, 27, 28)), vt=MID, pg0=16, **S),
     "sv": dict(np_=give((16, 18, 19, 21, 22, 23, 25, 26, 27, 29)), pg0=16, **S), "s1": dict(np_=give((10, 17, 19, 20, 22, 23, 25, 26, 28, 29)), vt=MID, pg0=16, **S),
     "233": dict(plan={0: 2, 2: 3, 4: 3, 6: 4, 7: 4}, np_=give((17, 19, 21, 22, 24, 25, 27, 28)), pg0=16, **S), "234": dict(plan={0: 2, 2: 3, 4: 4, 6: 4, 7: 4}, np_=give((10, 17, 19, 21, 22, 24, 25, 27, 28)), vt=MID, pg0=16, **S)}
for k, kw in V.items():
    gen(f"z_{k}.s", **{**B, **kw})
gen("z_chk1.s", **{**B, **V["sm16"]}, thr=0.25)
print("z_a.s z_sm16.s z_s1.s z_234.s")
```
